```python
import torch

def _softmax(x, axis=-1):
    return torch.softmax(x, dim=axis)
def _gelu(x):
    return torch.nn.functional.gelu(x, approximate="tanh")
def _silu(x):
    return torch.nn.functional.silu(x)
def _sigmoid(x):
    return torch.sigmoid(x)
def _layernorm(x, axis=-1, eps=1e-5):
    m = x.mean(dim=axis, keepdim=True)
    v = x.var(dim=axis, keepdim=True, unbiased=False)
    return (x - m) / torch.sqrt(v + eps)
def _scatter_add(tgt, idx, src, axis=0):
    return tgt.clone().index_add_(axis, idx, src)
def _segment_sum(src, seg, n):
    out = torch.zeros((n,) + src.shape[1:], dtype=src.dtype)
    return out.index_add_(0, seg, src)
def _pad(x, pw):
    flat = tuple(v for pair in reversed(pw) for v in pair)
    return torch.nn.functional.pad(x, flat)

kernel_name = 'recurrent_scan__mha_block_cached__glu_gated_reglu__prompt'

def setup_inputs():

    _w = (lambda a: (lambda t: t.to(torch.bfloat16) if t.is_floating_point() else t)(torch.as_tensor(a)))
    def _A_setup():
        B, Sq, D = 1, 2048, 1024
        H, Sk, Dh = 32, 2048, 128
        return {
            "x": _w((lambda *s: torch.randn(*s, dtype=torch.bfloat16) * 0.05)(B, Sq, D)),
            "k_cache": _w((lambda *s: torch.randn(*s, dtype=torch.bfloat16) * 1.6)(B, H, Sk, Dh)),
            "v_cache": _w((lambda *s: torch.randn(*s, dtype=torch.bfloat16) * 1.6)(B, H, Sk, Dh)),
            "wq": _w((lambda *s: torch.randn(*s, dtype=torch.bfloat16) * 1.6)(D, H * Dh) * (D ** -0.5)),
            "wo": _w((lambda *s: torch.randn(*s, dtype=torch.bfloat16) * 1.6)(H * Dh, D) * ((H * Dh) ** -0.5)),
        }
    _A_in = _A_setup()

    def _B_setup():
        B, S, D, F = 1, 2048, 1024, 3584
        return {
            "x": _w((lambda *s: torch.randn(*s, dtype=torch.bfloat16) * 0.05)(B, S, D)),
            "W_gate": _w((lambda *s: torch.randn(*s, dtype=torch.bfloat16) * 0.2)(D, F) * (2.0 / D) ** 0.5),
            "W_up": _w((lambda *s: torch.randn(*s, dtype=torch.bfloat16) * 0.2)(D, F) * (2.0 / D) ** 0.5),
            "W_down": _w((lambda *s: torch.randn(*s, dtype=torch.bfloat16) * 0.2)(F, D) * (1.0 / F) ** 0.5),
        }
    _B_in = _B_setup()

    return {
        "A_x": _A_in["x"],
        "A_k_cache": _A_in["k_cache"],
        "A_v_cache": _A_in["v_cache"],
        "A_wq": _A_in["wq"],
        "A_wo": _A_in["wo"],
        "B_x": _B_in["x"],
        "B_W_gate": _B_in["W_gate"],
        "B_W_up": _B_in["W_up"],
        "B_W_down": _B_in["W_down"],
    }

def reference(A_x, A_k_cache, A_v_cache, A_wq, A_wo, B_x, B_W_gate, B_W_up, B_W_down):
    def _A_ref(x, k_cache, v_cache, wq, wo):
        B, Sq, D = x.shape
        H, Dh = 32, 128
        q = (lambda x, *d: x.permute(*d))((x @ wq).reshape(B, Sq, H, Dh), 0, 2, 1, 3)
        scores = torch.einsum("bhqd,bhkd->bhqk", q, k_cache) * (Dh ** -0.5)
        p = _softmax(scores, axis=-1)
        o = torch.einsum("bhqk,bhkd->bhqd", p, v_cache)
        return (lambda x, *d: x.permute(*d))(o, 0, 2, 1, 3).reshape(B, Sq, H * Dh) @ wo

    def _B_ref(x, W_gate, W_up, W_down):
        gate = torch.einsum("bsd,df->bsf", x, W_gate)
        up = torch.einsum("bsd,df->bsf", x, W_up)
        gate = gate * (lambda x, dt: x.to(dt))(gate > 0, gate.dtype)
        h = gate * up
        return torch.einsum("bsf,fd->bsd", h, W_down)

    x = A_x
    xn = _layernorm(x, axis=-1)
    s = _A_ref(xn, A_k_cache, A_v_cache, A_wq, A_wo)
    g = _silu(_B_ref(xn, B_W_gate, B_W_up, B_W_down))
    return x + s * g
```

```python
import re

_VR = re.compile(r'\bv\[(\d+):(\d+)\]|\bv(\d+)\b')
_SR = re.compile(r'\bs\[(\d+):(\d+)\]|\bs(\d+)\b')
TRANS = ('v_exp_f32', 'v_log_f32', 'v_rcp_f32', 'v_rsq_f32', 'v_sqrt_f32', 'v_sin_f32', 'v_cos_f32')


def vregs(tok):
    out = []
    for m in _VR.finditer(tok):
        if m.group(1) is not None:
            out += list(range(int(m.group(1)), int(m.group(2)) + 1))
        else:
            out.append(int(m.group(3)))
    return out


def sregs(tok):
    out = []
    for m in _SR.finditer(tok):
        if m.group(1) is not None:
            out += list(range(int(m.group(1)), int(m.group(2)) + 1))
        else:
            out.append(int(m.group(3)))
    if re.search(r'\bvcc\b', tok):
        out += [106, 107]
    if re.search(r'\bm0\b', tok):
        out += [124]
    return out


def split_ops(s):
    ops, depth, cur = [], 0, ''
    for ch in s:
        if ch == '[':
            depth += 1
        elif ch == ']':
            depth -= 1
        if ch == ',' and depth == 0:
            ops.append(cur.strip())
            cur = ''
        else:
            cur += ch
    if cur.strip():
        ops.append(cur.strip())
    return ops


class Ins:
    __slots__ = ('text', 'op', 'kind', 'vw', 'vr', 'sw', 'sr', 'ws', 'srcc', 'srcab', 'passes', 'dpp', 'lds')

    def __init__(self, text):
        self.text = text
        t = text.split(';')[0].strip()
        parts = t.split(None, 1)
        op = parts[0]
        self.op = op
        rest = parts[1] if len(parts) > 1 else ''
        ops = split_ops(rest)
        self.vw, self.vr, self.sw, self.sr = [], [], [], []
        self.srcc, self.srcab = [], []
        self.ws = 1
        self.passes = 0
        self.dpp = ('_dpp' in op) or ('quad_perm' in rest) or ('row_' in rest)
        self.lds = False
        if op == 's_nop':
            self.kind = 'nop'
            self.ws = int(ops[0], 0) + 1
        elif op.startswith('v_mfma'):
            self.kind = 'mfma'
            self.vw = vregs(ops[0])
            self.srcab = vregs(ops[1]) + vregs(ops[2])
            self.srcc = vregs(ops[3])
            self.vr = self.srcab + self.srcc
            self.passes = 8 if '32x32x16' in op else 4
        elif op.startswith('v_cmp'):
            self.kind = 'valu'
            self.sw = sregs(ops[0])
            for o in ops[1:]:
                self.vr += vregs(o)
                self.sr += sregs(o)
        elif op.startswith('v_readfirstlane') or op.startswith('v_readlane'):
            self.kind = 'valu'
            self.sw = sregs(ops[0])
            for o in ops[1:]:
                self.vr += vregs(o)
                self.sr += sregs(o)
        elif op.startswith('v_permlane'):
            self.kind = 'valu'
            self.vw = vregs(ops[0]) + vregs(ops[1])
            self.vr = list(self.vw)
        elif op.startswith('v_'):
            self.kind = 'valu'
            self.vw = vregs(ops[0])
            for o in ops[1:]:
                self.vr += vregs(o)
                self.sr += sregs(o)
            if op.startswith('v_fmac') or op.startswith('v_mac'):
                self.vr += self.vw
        elif op.startswith('ds_read'):
            self.kind = 'ds'
            self.vw = vregs(ops[0])
            self.vr = vregs(ops[1])
        elif op.startswith('ds_write'):
            self.kind = 'ds'
            for o in ops:
                self.vr += vregs(o)
        elif op.startswith('buffer_load') or op.startswith('global_load'):
            self.kind = 'vmem'
            if re.search(r'\blds\b', rest):
                self.lds = True
                for o in ops:
                    self.vr += vregs(o)
                    self.sr += sregs(o)
                self.sr += [124]
            else:
                self.vw = vregs(ops[0])
                for o in ops[1:]:
                    self.vr += vregs(o)
                    self.sr += sregs(o)
        elif op.startswith('buffer_store') or op.startswith('global_store') or 'atomic' in op:
            self.kind = 'store'
            for o in ops:
                self.vr += vregs(o)
                self.sr += sregs(o)
        elif op.startswith('s_'):
            self.kind = 'salu'
            if ops and not op.startswith('s_cmp') and not op.startswith('s_waitcnt') and not op.startswith('s_cbranch') \
                    and not op.startswith('s_branch') and not op.startswith('s_barrier') and not op.startswith('s_setprio'):
                self.sw = sregs(ops[0])
                for o in ops[1:]:
                    self.sr += sregs(o)
        else:
            raise ValueError('unknown instruction: ' + text)


class Asm:
    def __init__(self):
        self.lines = []
        self.seq = []

    def __call__(self, text):
        for ln in text.strip().split('\n'):
            ln = ln.strip()
            if not ln:
                continue
            if ln.startswith(';'):
                self.lines.append('    ' + ln)
                continue
            self.lines.append('    ' + ln)
            self.seq.append(Ins(ln))

    def label(self, name):
        self.lines.append(name + ':')

    def raw(self, text):
        self.lines.append(text)

    def brk(self):
        self.seq.append(None)

    def text(self):
        return '\n'.join(self.lines) + '\n'

    def nop(self, n):
        while n > 0:
            k = min(n, 16)
            self('s_nop %d' % (k - 1))
            n -= k

    def check(self):
        probs = []
        pos = 0
        lastw = {}
        lastc = {}
        lasts = {}
        lastst = {}
        for ins in self.seq:
            if ins is None:
                lastw.clear(); lastc.clear(); lasts.clear(); lastst.clear()
                continue

            def need(reg, n, why, table=lastw):
                p = table[reg][0]
                if pos - p < n:
                    probs.append('%s: need %d have %d: [%s] -> [%s]' % (why, n, pos - p, table[reg][1].text, ins.text))
            for r in ins.vr:
                if r in lastw:
                    w = lastw[r][1]
                    if w.kind == 'mfma':
                        base = {8: 12, 4: 8}[w.passes]
                        if ins.kind == 'mfma':
                            if r in ins.srcab:
                                need(r, base, 'mfma D->A/B')
                            elif r in ins.srcc:
                                if ins.srcc == w.vw and ins.passes == w.passes:
                                    pass
                                else:
                                    need(r, {8: 10, 4: 6}[w.passes], 'mfma D->C overlap')
                        else:
                            need(r, base, 'mfma D->read')
                    elif w.kind == 'valu':
                        if ins.kind == 'mfma':
                            need(r, 2, 'valu->mfma')
                        elif ins.op.startswith('v_permlane'):
                            need(r, 2, 'valu->permlane')
                        elif ins.op.startswith('v_readfirstlane') or ins.op.startswith('v_readlane'):
                            need(r, 1, 'valu->readlane')
                        elif ins.dpp:
                            need(r, 2, 'valu->dpp')
                        elif ins.kind == 'valu' and w.op.split('_e')[0] in TRANS and ins.op.split('_e')[0] not in TRANS:
                            need(r, 1, 'trans->valu')
            for r in ins.vw:
                if r in lastw and lastw[r][1].kind == 'mfma':
                    w = lastw[r][1]
                    if ins.kind == 'mfma':
                        if not (ins.srcc == w.vw and ins.vw == w.vw):
                            need(r, {8: 10, 4: 6}[w.passes], 'mfma WAW')
                    else:
                        need(r, {8: 12, 4: 8}[w.passes], 'mfma D->write')
                if r in lastc and ins.kind == 'valu':
                    p, ps, ci = lastc[r]
                    n = {8: 7, 4: 3}[ps]
                    if pos - p < n:
                        probs.append('mfma C WAR: need %d have %d: [%s] -> [%s]' % (n, pos - p, ci.text, ins.text))
                if r in lastst and ins.kind in ('valu',):
                    if pos - lastst[r][0] < 2:
                        probs.append('store data WAR: [%s] -> [%s]' % (lastst[r][1].text, ins.text))
            for s in ins.sr:
                if s in lasts:
                    p, w = lasts[s]
                    if w.kind == 'valu':
                        if ins.kind in ('vmem', 'store'):
                            if pos - p < 5:
                                probs.append('valu sgpr->vmem need 5: [%s] -> [%s]' % (w.text, ins.text))
                        elif ins.kind == 'valu':
                            if pos - p < 2:
                                probs.append('valu sgpr->valu need 2: [%s] -> [%s]' % (w.text, ins.text))
                    elif w.kind == 'salu' and s == 124 and ins.lds:
                        if pos - p < 1:
                            probs.append('m0->lds dma need 1: [%s] -> [%s]' % (w.text, ins.text))
            pos += ins.ws
            for r in ins.vw:
                lastw[r] = (pos, ins)
            if ins.kind == 'mfma':
                for r in ins.srcc:
                    lastc[r] = (pos, ins.passes, ins)
            if ins.kind == 'store' and ('x4' in ins.op or 'x3' in ins.op):
                for r in ins.vr:
                    lastst[r] = (pos, ins)
            for s in ins.sw:
                lasts[s] = (pos, ins)
        return probs
```

```python
import sys, os, struct, math
sys.path.insert(0, os.path.dirname(os.path.abspath(__file__)))
from emit import Asm

NAME = 'recurrent_scan__mha_block_cached__glu_gated_reglu__prompt'
MB = 1 << 20
WS_XN, WS_Q, WS_H, WS_O, WS_S, WS_G = 0, 4 * MB, 20 * MB, 36 * MB, 52 * MB, 56 * MB
KA_X, KA_K, KA_V, KA_WQ, KA_WO, KA_BX, KA_WG, KA_WU, KA_WD, KA_OUT, KA_DBG, KA_WS = [8 * i for i in range(12)]
S_TOK, D_MODEL, NH, DH, FF = 2048, 1024, 32, 128, 3584


def f32bits(x):
    return struct.unpack('<I', struct.pack('<f', x))[0]


QSCALE = math.log2(math.e) / math.sqrt(128.0)


def kernel_begin(a, name):
    a.raw('.text')
    a.raw('.globl %s' % name)
    a.raw('.p2align 8')
    a.raw('.type %s,@function' % name)
    a.label(name)
    a.brk()


def kernel_end(a, name, vgpr, sgpr=102, accum=None):
    if accum is None:
        accum = (vgpr + 3) // 4 * 4
    a.raw('.section .rodata,"a"')
    a.raw('.p2align 6')
    a.raw('.amdhsa_kernel %s' % name)
    a.raw('  .amdhsa_next_free_vgpr %d' % vgpr)
    a.raw('  .amdhsa_next_free_sgpr %d' % sgpr)
    a.raw('  .amdhsa_accum_offset %d' % accum)
    a.raw('  .amdhsa_group_segment_fixed_size 0')
    a.raw('  .amdhsa_kernarg_size 96')
    a.raw('  .amdhsa_user_sgpr_count 2')
    a.raw('  .amdhsa_user_sgpr_kernarg_segment_ptr 1')
    a.raw('  .amdhsa_system_sgpr_workgroup_id_x 1')
    a.raw('  .amdhsa_float_denorm_mode_32 3')
    a.raw('.end_amdhsa_kernel')


def srd(a, d, base, off, size):
    if off:
        a('s_add_u32 s%d, s%d, 0x%x' % (d, base, off))
        a('s_addc_u32 s%d, s%d, 0' % (d + 1, base + 1))
    else:
        a('s_mov_b32 s%d, s%d' % (d, base))
        a('s_mov_b32 s%d, s%d' % (d + 1, base + 1))
    a('s_and_b32 s%d, s%d, 0xffff' % (d + 1, d + 1))
    a('s_mov_b32 s%d, 0x%x' % (d + 2, size))
    a('s_mov_b32 s%d, 0x00020000' % (d + 3))


def wave_sum(a, v, t, sbase):
    for mod in ('quad_perm:[1,0,3,2]', 'quad_perm:[2,3,0,1]', 'row_half_mirror', 'row_mirror'):
        a('s_nop 1')
        a('v_add_f32_dpp v%d, v%d, v%d %s row_mask:0xf bank_mask:0xf' % (t, v, v, mod))
        a('v_mov_b32 v%d, v%d' % (v, t))
    a('s_nop 0')
    for i in range(4):
        a('v_readlane_b32 s%d, v%d, %d' % (sbase + i, v, 16 * i))
    a('s_nop 1')
    a('v_mov_b32 v%d, s%d' % (v, sbase))
    for i in range(1, 4):
        a('v_add_f32 v%d, s%d, v%d' % (v, sbase + i, v))


def bf16_round(a, v, t=None):
    a('v_cvt_pk_bf16_f32 v%d, v%d, v%d' % (v, v, v))
    a('v_lshlrev_b32 v%d, 16, v%d' % (v, v))


def gen_ln(a):
    name = 'ln_kernel'
    kernel_begin(a, name)
    a('s_cmp_ge_u32 s2, 512')
    a('s_cbranch_scc1 L_ln_done')
    a('s_load_dwordx2 s[4:5], s[0:1], %d' % KA_X)
    a('s_load_dwordx2 s[6:7], s[0:1], %d' % KA_WS)
    a('v_and_b32 v1, 63, v0')
    a('v_lshrrev_b32 v2, 6, v0')
    a('s_lshl_b32 s3, s2, 2')
    a('v_add_u32 v2, s3, v2')
    a('v_lshlrev_b32 v2, 11, v2')
    a('v_lshl_add_u32 v2, v1, 4, v2')
    a('s_waitcnt lgkmcnt(0)')
    srd(a, 8, 4, 0, 4 * MB)
    srd(a, 12, 6, WS_XN, 4 * MB)
    a('buffer_load_dwordx4 v[4:7], v2, s[8:11], 0 offen')
    a('buffer_load_dwordx4 v[8:11], v2, s[8:11], 0 offen offset:1024')
    a('s_waitcnt vmcnt(0)')
    for i in range(8):
        a('v_lshlrev_b32 v%d, 16, v%d' % (16 + 2 * i, 4 + i))
        a('v_and_b32 v%d, 0xffff0000, v%d' % (17 + 2 * i, 4 + i))
    a('v_add_f32 v32, v16, v17')
    for i in range(2, 16):
        a('v_add_f32 v32, v32, v%d' % (16 + i))
    wave_sum(a, 32, 33, 20)
    a('v_mul_f32 v32, 0x%x, v32' % f32bits(1.0 / 1024))
    a('v_sub_f32 v34, v16, v32')
    a('v_mul_f32 v35, v34, v34')
    for i in range(1, 16):
        a('v_sub_f32 v34, v%d, v32' % (16 + i))
        a('v_fmac_f32 v35, v34, v34')
    wave_sum(a, 35, 33, 20)
    a('v_mul_f32 v35, 0x%x, v35' % f32bits(1.0 / 1024))
    bf16_round(a, 32)
    bf16_round(a, 35)
    a('v_add_f32 v35, 0x%x, v35' % f32bits(1e-5))
    bf16_round(a, 35)
    a('v_sqrt_f32 v35, v35')
    a('s_nop 0')
    bf16_round(a, 35)
    a('v_rcp_f32 v36, v35')
    a('s_nop 0')
    for i in range(16):
        r = 16 + i
        a('v_sub_f32 v%d, v%d, v32' % (r, r))
        bf16_round(a, r)
        a('v_mul_f32 v37, v%d, v36' % r)
        a('v_fma_f32 v38, -v37, v35, v%d' % r)
        a('v_fma_f32 v%d, v38, v36, v37' % r)
    for i in range(8):
        a('v_cvt_pk_bf16_f32 v%d, v%d, v%d' % (4 + i, 16 + 2 * i, 17 + 2 * i))
    a('buffer_store_dwordx4 v[4:7], v2, s[12:15], 0 offen')
    a('buffer_store_dwordx4 v[8:11], v2, s[12:15], 0 offen offset:1024')
    a.label('L_ln_done')
    a('s_endpgm')
    kernel_end(a, name, 40, 32)


def interleave(a, mfmas, fillers, start=0):
    n = len(mfmas)
    slots = [[] for _ in range(n)]
    m = n - start
    for i, f in enumerate(fillers):
        slots[start + (i * m) // max(len(fillers), 1)].append(f)
    for i in range(n):
        a(mfmas[i])
        for f in slots[i]:
            a(f)


def gen_g1(a, mode):
    name = 'g1%s_kernel' % mode
    L = 'L_g1%s_' % mode
    if mode == 'gu':
        NT, LDW, NW = 28, FF * 2, 224
        WSIZE = D_MODEL * FF * 2
    else:
        NT, LDW, NW = 16, 4096 * 2, 128
        WSIZE = D_MODEL * 4096 * 2
    per_xcd = NW // 8
    kernel_begin(a, name)
    a('s_cmp_ge_u32 s2, %d' % NW)
    a('s_cbranch_scc1 %sdone' % L)
    a('s_load_dwordx2 s[4:5], s[0:1], %d' % KA_WS)
    a('s_load_dwordx2 s[6:7], s[0:1], %d' % (KA_WG if mode == 'gu' else KA_WQ))
    a('s_load_dwordx2 s[28:29], s[0:1], %d' % (KA_WU if mode == 'gu' else KA_WQ))
    a('s_and_b32 s3, s2, 7')
    a('s_mul_i32 s3, s3, %d' % per_xcd)
    a('s_lshr_b32 s30, s2, 3')
    a('s_add_u32 s3, s3, s30')
    a('s_lshr_b32 s31, s3, 3')
    a('s_and_b32 s30, s3, 7')
    VL, VW = 200, 201
    a('v_and_b32 v%d, 63, v0' % VL)
    a('v_lshrrev_b32 v%d, 6, v0' % VW)
    a('s_nop 0')
    a('v_readfirstlane_b32 s32, v%d' % VW)
    VXO, VWO = 202, 203
    VXA = 204
    VWA = 208
    T0, T1, T2, T3 = 210, 211, 212, 213
    a('v_lshrrev_b32 v%d, 3, v%d' % (T0, VL))
    a('v_and_b32 v%d, 7, v%d' % (T1, VL))
    a('v_lshrrev_b32 v%d, 1, v%d' % (T2, T0))
    a('v_and_b32 v%d, 1, v%d' % (T3, VW))
    a('v_lshl_add_u32 v%d, v%d, 2, v%d' % (T2, T3, T2))
    a('v_xor_b32 v%d, v%d, v%d' % (T1, T1, T2))
    a('v_lshl_add_u32 v%d, v%d, 3, v%d' % (T0, VW, T0))
    a('s_lshl_b32 s33, s30, 8')
    a('v_add_u32 v%d, s33, v%d' % (T0, T0))
    a('v_lshlrev_b32 v%d, 11, v%d' % (T0, T0))
    a('v_lshl_add_u32 v%d, v%d, 4, v%d' % (VXO, T1, T0))
    a('v_lshrrev_b32 v%d, 4, v%d' % (T0, VL))
    a('v_and_b32 v%d, 15, v%d' % (T1, VL))
    a('v_lshlrev_b32 v%d, 2, v%d' % (T2, T0))
    a('v_xor_b32 v%d, v%d, v%d' % (T1, T1, T2))
    a('v_lshl_add_u32 v%d, v%d, 2, v%d' % (T0, VW, T0))
    a('s_mov_b32 s33, %d' % LDW)
    a('v_mul_lo_u32 v%d, v%d, s33' % (T0, T0))
    a('v_lshl_add_u32 v%d, v%d, 4, v%d' % (VWO, T1, T0))
    a('v_and_b32 v%d, 31, v%d' % (T0, VL))
    a('v_lshrrev_b32 v%d, 2, v%d' % (T1, VW))
    a('v_lshl_add_u32 v%d, v%d, 7, v%d' % (T0, T1, T0))
    a('v_lshlrev_b32 v%d, 7, v%d' % (T0, T0))
    a('v_lshrrev_b32 v%d, 5, v%d' % (T1, VL))
    a('v_bfe_u32 v%d, v%d, 1, 3' % (T2, VL))
    a('v_xor_b32 v%d, v%d, v%d' % (T1, T1, T2))
    for ks in range(4):
        a('v_xor_b32 v%d, %d, v%d' % (T2, 2 * ks, T1))
        a('v_lshl_add_u32 v%d, v%d, 4, v%d' % (VXA + ks, T2, T0))
    a('v_bfe_u32 v%d, v%d, 2, 2' % (T0, VL))
    a('v_lshrrev_b32 v%d, 5, v%d' % (T1, VL))
    a('v_lshl_add_u32 v%d, v%d, 3, v%d' % (T1, T1, T0))
    a('v_lshlrev_b32 v%d, 8, v%d' % (T1, T1))
    a('v_and_b32 v%d, 3, v%d' % (T2, VW))
    a('v_xor_b32 v%d, v%d, v%d' % (T2, T2, T0))
    a('v_lshl_add_u32 v%d, v%d, 6, v%d' % (T1, T2, T1))
    a('v_bfe_u32 v%d, v%d, 4, 1' % (T2, VL))
    a('v_lshl_add_u32 v%d, v%d, 5, v%d' % (T1, T2, T1))
    a('v_bfe_u32 v%d, v%d, 1, 1' % (T2, VL))
    a('v_lshl_add_u32 v%d, v%d, 4, v%d' % (T1, T2, T1))
    a('v_and_b32 v%d, 1, v%d' % (T2, VL))
    a('v_lshl_add_u32 v%d, v%d, 3, v%d' % (T1, T2, T1))
    a('v_add_u32 v%d, 0x8000, v%d' % (VWA, T1))
    a('s_waitcnt lgkmcnt(0)')
    srd(a, 8, 4, WS_XN, 4 * MB)
    srd(a, 12, 6, 0, WSIZE)
    srd(a, 16, 28, 0, WSIZE)
    if mode == 'gu':
        srd(a, 20, 4, WS_H, S_TOK * FF * 2)
    else:
        srd(a, 20, 4, WS_Q, S_TOK * 4096 * 2)
    a('s_mov_b32 s24, 0')
    if mode == 'gu':
        a('s_lshl_b32 s25, s31, 8')
        a('s_mov_b32 s34, s25')
    else:
        a('s_lshl_b32 s25, s31, 9')
        a('s_add_u32 s34, s25, 256')
    a('s_lshl_b32 s26, s32, 10')

    def dma_list():
        out = []
        for j in range(4):
            out.append('s_add_u32 m0, s26, %d\ns_add_u32 s35, s24, %d\nbuffer_load_dwordx4 v%d, s[8:11], s35 offen lds'
                       % (j * 8192, j * 131072, VXO))
        for j in range(2):
            out.append('s_add_u32 m0, s26, %d\ns_add_u32 s35, s25, %d\nbuffer_load_dwordx4 v%d, s[12:15], s35 offen lds'
                       % (32768 + j * 8192, j * 32 * LDW, VWO))
            out.append('s_add_u32 m0, s26, %d\ns_add_u32 s35, s34, %d\nbuffer_load_dwordx4 v%d, s[16:19], s35 offen lds'
                       % (49152 + j * 8192, j * 32 * LDW, VWO))
        return out

    def advance():
        a('s_add_u32 s24, s24, 128')
        a('s_add_u32 s25, s25, %d' % (64 * LDW))
        a('s_add_u32 s34, s34, %d' % (64 * LDW))
        a('s_xor_b32 s26, s26, 0x10000')

    FA, FB = 128, 152

    def reads(ks, F):
        out = []
        out.append('ds_read_b64_tr_b16 v[%d:%d], v%d offset:%d' % (F, F + 1, VWA, ks * 4096))
        out.append('ds_read_b64_tr_b16 v[%d:%d], v%d offset:%d' % (F + 2, F + 3, VWA, ks * 4096 + 1024))
        out.append('ds_read_b128 v[%d:%d], v%d offset:%d' % (F + 8, F + 11, VXA + ks, 0))
        out.append('ds_read_b64_tr_b16 v[%d:%d], v%d offset:%d' % (F + 4, F + 5, VWA, 16384 + ks * 4096))
        out.append('ds_read_b64_tr_b16 v[%d:%d], v%d offset:%d' % (F + 6, F + 7, VWA, 16384 + ks * 4096 + 1024))
        for tb in range(1, 4):
            out.append('ds_read_b128 v[%d:%d], v%d offset:%d' % (F + 8 + 4 * tb, F + 11 + 4 * tb, VXA + ks, tb * 4096))
        return out

    def mf(F, first=False):
        out = []
        for tb in range(4):
            for nb in range(2):
                acc = nb * 64 + tb * 16
                c = '0' if first else 'v[%d:%d]' % (acc, acc + 15)
                out.append('v_mfma_f32_32x32x16_bf16 v[%d:%d], v[%d:%d], v[%d:%d], %s'
                           % (acc, acc + 15, F + 4 * nb, F + 4 * nb + 3, F + 8 + 4 * tb, F + 11 + 4 * tb, c))
        return out

    def toggle():
        return ['v_xor_b32 v%d, 0x10000, v%d' % (r, r) for r in (VXA, VXA + 1, VXA + 2, VXA + 3, VWA)]

    for g in dma_list():
        a(g)
    advance()
    a('s_waitcnt vmcnt(0)')
    a('s_barrier')
    for g in dma_list():
        a(g)
    advance()
    for r in reads(0, FA):
        a(r)

    def stage(first, dma, nxt):
        for ks in range(3):
            a('s_waitcnt lgkmcnt(0)')
            cur, oth = (FA, FB) if ks % 2 == 0 else (FB, FA)
            rd = reads(ks + 1, oth)
            m = mf(cur, first and ks == 0)
            fl = ['\n'.join(rd[2 * i:2 * i + 2]) for i in range(4)]
            for i in range(8):
                a(m[i])
                if i < 4:
                    a(fl[i])
        a('s_waitcnt lgkmcnt(0)')
        m = mf(FB)
        if nxt:
            a('s_waitcnt vmcnt(0)')
            a('s_barrier')
            for t in toggle():
                a(t)
            rd = reads(0, FA)
            fl = ['\n'.join(rd[2 * i:2 * i + 2]) for i in range(4)]
            dl = dma_list() if dma else []
            for i in range(8):
                a(m[i])
                if i < 4:
                    a(fl[i])
                if dl:
                    a(dl[i])
            if dma:
                advance()
        else:
            for i in range(8):
                a(m[i])

    stage(True, True, True)
    a('s_mov_b32 s27, 13')
    a.label(L + 'loop')
    stage(False, True, True)
    a('s_sub_u32 s27, s27, 1')
    a('s_cmp_lg_u32 s27, 0')
    a('s_cbranch_scc1 %sloop' % L)
    stage(False, False, True)
    stage(False, False, False)
    a.nop(16)
    LDO = FF * 2 if mode == 'gu' else 8192
    VO = 204
    a('v_and_b32 v%d, 31, v%d' % (T0, VL))
    a('v_lshrrev_b32 v%d, 2, v%d' % (T1, VW))
    a('v_lshl_add_u32 v%d, v%d, 7, v%d' % (T0, T1, T0))
    a('s_lshl_b32 s33, s30, 8')
    a('v_add_u32 v%d, s33, v%d' % (T0, T0))
    a('s_mov_b32 s33, %d' % LDO)
    a('v_mul_lo_u32 v%d, v%d, s33' % (T0, T0))
    a('v_and_b32 v%d, 3, v%d' % (T1, VW))
    a('v_lshl_add_u32 v%d, v%d, 6, v%d' % (T0, T1, T0))
    a('v_lshrrev_b32 v%d, 5, v%d' % (T1, VL))
    a('v_lshl_add_u32 v%d, v%d, 4, v%d' % (T0, T1, T0))
    if mode == 'gu':
        a('s_lshl_b32 s33, s31, 8')
    else:
        a('s_lshl_b32 s33, s31, 9')
    a('v_add_u32 v%d, s33, v%d' % (VO, T0))
    a('s_mov_b32 s36, 0x%x' % f32bits(QSCALE))

    def pack_store(src, P, soff, imm):
        for i in range(8):
            a('v_cvt_pk_bf16_f32 v%d, v%d, v%d' % (P + i, src + 2 * i, src + 2 * i + 1))
        a('s_nop 1')
        a('v_permlane32_swap_b32 v%d, v%d' % (P + 0, P + 2))
        a('v_permlane32_swap_b32 v%d, v%d' % (P + 1, P + 3))
        a('v_permlane32_swap_b32 v%d, v%d' % (P + 4, P + 6))
        a('v_permlane32_swap_b32 v%d, v%d' % (P + 5, P + 7))
        a('buffer_store_dwordx4 v[%d:%d], v%d, s[20:23], %s offen offset:%d' % (P, P + 3, VO, soff, imm))
        a('buffer_store_dwordx4 v[%d:%d], v%d, s[20:23], %s offen offset:%d' % (P + 4, P + 7, VO, soff, imm + 32))

    for tb in range(4):
        a('s_mov_b32 s37, %d' % (tb * 32 * LDO))
        P = 128 + (tb % 2) * 16
        if mode == 'gu':
            g, u = tb * 16, 64 + tb * 16
            for i in range(16):
                a('v_max_f32 v%d, 0, v%d' % (g + i, g + i))
                a('v_mul_f32 v%d, v%d, v%d' % (g + i, g + i, u + i))
            pack_store(g, P, 's37', 0)
        else:
            for nb in range(2):
                g = nb * 64 + tb * 16
                for i in range(8):
                    r = g + 2 * i
                    a('v_cvt_pk_bf16_f32 v%d, v%d, v%d' % (T0, r, r + 1))
                    a('v_lshlrev_b32 v%d, 16, v%d' % (r, T0))
                    a('v_and_b32 v%d, 0xffff0000, v%d' % (r + 1, T0))
                    a('v_mul_f32 v%d, s36, v%d' % (r, r))
                    a('v_mul_f32 v%d, s36, v%d' % (r + 1, r + 1))
                pack_store(g, P + nb * 8, 's37', nb * 256)
    a.label(L + 'done')
    a('s_endpgm')
    kernel_end(a, name, 216, 48)


def gen_attn(a):
    name = 'attn_kernel'
    L = 'L_at_'
    R = 8
    NS = 4
    KST, VST = 16640, 16384
    VRING = NS * KST
    VO_, VQ, VS, VP, VC, VF = 0, 64, 96, 128, 144, 160
    VT = 192
    VPS, VLS = 196, 197
    VKA, VVA, VDO = 200, 204, 208
    VL, VW = 209, 210
    T0, T1, T2, T3 = 212, 213, 214, 215
    kernel_begin(a, name)
    a('s_cmp_ge_u32 s2, 256')
    a('s_cbranch_scc1 %sdone' % L)
    a('s_load_dwordx2 s[4:5], s[0:1], %d' % KA_WS)
    a('s_load_dwordx2 s[6:7], s[0:1], %d' % KA_K)
    a('s_load_dwordx2 s[28:29], s[0:1], %d' % KA_V)
    a('s_and_b32 s3, s2, 7')
    a('s_lshl_b32 s3, s3, 2')
    a('s_bfe_u32 s30, s2, 0x20003')
    a('s_add_u32 s30, s30, s3')
    a('s_lshr_b32 s31, s2, 5')
    a('v_and_b32 v%d, 63, v0' % VL)
    a('v_lshrrev_b32 v%d, 6, v0' % VW)
    a('s_nop 0')
    a('v_readfirstlane_b32 s32, v%d' % VW)
    a('v_lshrrev_b32 v%d, 4, v%d' % (T0, VL))
    a('v_and_b32 v%d, 15, v%d' % (T1, VL))
    a('v_lshlrev_b32 v%d, 2, v%d' % (T2, T0))
    a('v_xor_b32 v%d, v%d, v%d' % (T1, T1, T2))
    a('v_lshl_add_u32 v%d, v%d, 2, v%d' % (T0, VW, T0))
    a('v_lshlrev_b32 v%d, 8, v%d' % (T0, T0))
    a('v_lshl_add_u32 v%d, v%d, 4, v%d' % (VDO, T1, T0))
    a('v_bfe_u32 v%d, v%d, 2, 3' % (T0, VL))
    a('v_mul_u32_u24 v%d, 1040, v%d' % (T0, T0))
    a('v_and_b32 v%d, 3, v%d' % (T1, VL))
    a('v_lshl_add_u32 v%d, v%d, 8, v%d' % (T0, T1, T0))
    a('v_lshrrev_b32 v%d, 5, v%d' % (T2, VL))
    a('v_lshl_add_u32 v%d, v%d, 4, v%d' % (T0, T2, T0))
    for kk in range(4):
        a('v_xor_b32 v%d, %d, v%d' % (T2, kk, T1))
        a('v_lshl_add_u32 v%d, v%d, 6, v%d' % (VKA + kk, T2, T0))
    a('v_bfe_u32 v%d, v%d, 2, 2' % (T0, VL))
    a('v_lshrrev_b32 v%d, 5, v%d' % (T1, VL))
    a('v_lshl_add_u32 v%d, v%d, 2, v%d' % (T1, T1, T0))
    a('v_lshlrev_b32 v%d, 8, v%d' % (T1, T1))
    a('v_bfe_u32 v%d, v%d, 4, 1' % (T2, VL))
    a('v_lshl_add_u32 v%d, v%d, 5, v%d' % (T1, T2, T1))
    a('v_bfe_u32 v%d, v%d, 1, 1' % (T2, VL))
    a('v_lshl_add_u32 v%d, v%d, 4, v%d' % (T1, T2, T1))
    a('v_and_b32 v%d, 1, v%d' % (T2, VL))
    a('v_lshl_add_u32 v%d, v%d, 3, v%d' % (T1, T2, T1))
    a('v_add_u32 v%d, 0x%x, v%d' % (T1, VRING, T1))
    for db in range(4):
        a('v_xor_b32 v%d, %d, v%d' % (T2, db, T0))
        a('v_lshl_add_u32 v%d, v%d, 6, v%d' % (VVA + db, T2, T1))
    VQA = 216
    a('v_and_b32 v%d, 31, v%d' % (T0, VL))
    a('v_lshl_add_u32 v%d, v%d, 5, v%d' % (T0, VW, T0))
    a('s_lshl_b32 s33, s31, 8')
    a('v_add_u32 v%d, s33, v%d' % (T0, T0))
    a('v_lshlrev_b32 v%d, 13, v%d' % (T0, T0))
    a('v_lshrrev_b32 v%d, 5, v%d' % (T1, VL))
    a('v_lshl_add_u32 v%d, v%d, 4, v%d' % (T0, T1, T0))
    a('s_lshl_b32 s33, s30, 8')
    a('v_add_u32 v%d, s33, v%d' % (VQA, T0))
    a('s_waitcnt lgkmcnt(0)')
    a('s_lshl_b32 s33, s30, 19')
    a('s_add_u32 s8, s6, s33')
    a('s_addc_u32 s9, s7, 0')
    a('s_and_b32 s9, s9, 0xffff')
    a('s_sub_u32 s10, 0x1000000, s33')
    a('s_mov_b32 s11, 0x00020000')
    a('s_add_u32 s12, s28, s33')
    a('s_addc_u32 s13, s29, 0')
    a('s_and_b32 s13, s13, 0xffff')
    a('s_sub_u32 s14, 0x1000000, s33')
    a('s_mov_b32 s15, 0x00020000')
    srd(a, 16, 4, WS_Q, 16 * MB)
    srd(a, 20, 4, WS_O, 16 * MB)
    for ks in range(8):
        a('buffer_load_dwordx4 v[%d:%d], v%d, s[16:19], 0 offen offset:%d' % (VQ + 4 * ks, VQ + 4 * ks + 3, VQA, ks * 32))
    a('s_mul_i32 s25, s32, 1040')
    a('s_lshl_b32 s26, s32, 10')
    a('s_add_u32 s26, s26, %d' % VRING)
    a('s_mov_b32 s24, 0')
    a('s_mov_b32 s36, 0x%x' % f32bits(2.0 ** 30))

    def dma_stage(st, with_v=True):
        out = []
        for j in range(2):
            out.append('s_add_u32 m0, s25, %d\ns_add_u32 s35, s24, %d\nbuffer_load_dwordx4 v%d, s[8:11], s35 offen lds'
                       % (st * KST + j * 8320, j * 8192, VDO))
        if with_v:
            for j in range(2):
                out.append('s_add_u32 m0, s26, %d\ns_sub_u32 s35, s24, %d\nbuffer_load_dwordx4 v%d, s[12:15], s35 offen lds'
                           % (st * VST + j * 8192, 16384 - j * 8192, VDO))
        out.append('s_add_u32 s24, s24, 16384')
        return out

    for g in dma_stage(0, False):
        a(g)
    for g in dma_stage(1):
        a(g)
    for g in dma_stage(2):
        a(g)
    for i in range(64):
        a('v_mov_b32 v%d, 0' % (VO_ + i))
    for i in range(16):
        a('v_mov_b32 v%d, 0' % (VC + i))
    a('v_mov_b32 v%d, 0' % VLS)
    a('s_waitcnt vmcnt(8)')
    a('s_barrier')

    class Seq:
        pass

    def qk_entries(blk_par, st, kb):
        S = VS + 16 * blk_par
        ents = []
        for ks in range(8):
            off = st * KST + kb * 8320 + (ks & 1) * 32
            ld = ['ds_read_b128 v[{f}:{f3}], v%d offset:%d' % (VKA + (ks >> 1), off)]
            c = 'v[%d:%d]' % (VC, VC + 15) if ks == 0 else 'v[%d:%d]' % (S, S + 15)
            m = 'v_mfma_f32_32x32x16_bf16 v[%d:%d], v[{f}:{f3}], v[%d:%d], %s' % (S, S + 15, VQ + 4 * ks, VQ + 4 * ks + 3, c)
            ents.append((ld, m))
        return ents

    def pv_entries(blk_par, st, kb):
        P = VP + 8 * blk_par
        ents = []
        for db in range(4):
            for t in range(2):
                off = st * VST + kb * 8192 + t * 4096
                ld = ['ds_read_b64_tr_b16 v[{f}:{f1}], v%d offset:%d' % (VVA + db, off),
                      'ds_read_b64_tr_b16 v[{f2}:{f3}], v%d offset:%d' % (VVA + db, off + 2048)]
                o = VO_ + 16 * db
                m = 'v_mfma_f32_32x32x16_bf16 v[%d:%d], v[{f}:{f3}], v[%d:%d], v[%d:%d]' % (o, o + 15, P + 4 * t, P + 4 * t + 3, o, o + 15)
                ents.append((ld, m))
        return ents

    def sm_groups(par):
        S, P = VS + 16 * par, VP + 8 * par
        gs = []
        for k in range(9):
            g = []
            if k < 8:
                t = VT + 2 * (k & 1)
                g.append('v_exp_f32 v%d, v%d' % (t, S + 2 * k))
                g.append('v_exp_f32 v%d, v%d' % (t + 1, S + 2 * k + 1))
            if k >= 1:
                t = VT + 2 * ((k - 1) & 1)
                if k == 1:
                    g.append('v_add_f32 v%d, v%d, v%d' % (VPS, t, t + 1))
                else:
                    g.append('v_add_f32 v%d, v%d, v%d' % (VPS, VPS, t))
                    g.append('v_add_f32 v%d, v%d, v%d' % (VPS, VPS, t + 1))
                g.append('v_cvt_pk_bf16_f32 v%d, v%d, v%d' % (P + k - 1, t, t + 1))
            gs.append(g)
        return gs

    def iter_slots(u_mod, qk=True, pv=True, sm_a=True, sm_b=True, qk_b=True, pv_b=True):
        st = u_mod % NS
        s1 = dict(ents=(qk_entries(0, st, 0) if qk else []) + (pv_entries(0, st, 0) if pv else []), sm=1 if sm_a else None)
        s2 = dict(ents=(qk_entries(1, st, 1) if qk_b else []) + (pv_entries(1, st, 1) if pv_b else []), sm=0 if sm_b else None)
        return [s1, s2]

    state = dict(ring=0, q=[])

    def fmt(t, f):
        return t.format(f=f, f1=f + 1, f2=f + 2, f3=f + 3)

    def emit_program(slots, nxt_ents, barrier_info):
        ents = []
        for s in slots:
            ents += s['ents']
        n = len(ents)
        allents = ents + nxt_ents
        idx = 0
        for s in slots:
            ne = len(s['ents'])
            groups = sm_groups(s['sm']) if s['sm'] is not None else []
            gslots = [[] for _ in range(max(ne, 1))]
            for gi, g in enumerate(groups):
                gslots[min((gi * ne) // len(groups) if ne else 0, max(ne - 1, 0))].append(g)
            if ne == 0:
                for g in groups:
                    for t in g:
                        a(t)
            for e in range(ne):
                f = state['pend'].pop(0)
                cnt = 0
                for qid in reversed(state['q']):
                    if qid == id(allents[idx]):
                        break
                    cnt += 1
                if any(qid == id(allents[idx]) for qid in state['q']):
                    a('s_waitcnt lgkmcnt(%d)' % min(cnt, 15))
                    keep = state['q'][len(state['q']) - cnt:] if cnt else []
                    state['q'] = keep
                a(fmt(allents[idx][1], f))
                j = idx + R
                if j == n and barrier_info is not None:
                    barrier_info()
                if j < len(allents):
                    for ld in allents[j][0]:
                        a(fmt(ld, f))
                        state['q'].append(id(allents[j]))
                    state['pend'].append(f)
                for g in gslots[e]:
                    for t in g:
                        a(t)
                if state.get('dma'):
                    a(state['dma'].pop(0))
                idx += 1
            if s['sm'] is not None:
                par = s['sm']
                lab = '%sok%d' % (L, state.setdefault('nlab', 0))
                state['nlab'] += 1
                a('v_cmp_lt_f32 vcc, s36, v%d' % VPS)
                a('s_cbranch_vccz %s' % lab)
                a('s_call_b64 s[38:39], %srare%d' % (L, par))
                a.label(lab)
                a('v_add_f32 v%d, v%d, v%d' % (VLS, VLS, VPS))
        while state.get('dma'):
            a(state['dma'].pop(0))

    def preload(ents):
        state['pend'] = []
        for i in range(R):
            f = VF + 4 * i
            for ld in ents[i][0]:
                a(fmt(ld, f))
                state['q'].append(id(ents[i]))
            state['pend'].append(f)

    def mk_barrier(u_next_dma_slot):
        def fn():
            a('s_waitcnt vmcnt(4)')
            a('s_barrier')
            state['dma'] = dma_stage(u_next_dma_slot)
        return fn

    def flat(slots):
        o = []
        for s in slots:
            o += s['ents']
        return o

    it0a = [dict(ents=qk_entries(0, 0, 0), sm=None)]
    it0b = [dict(ents=qk_entries(1, 0, 1), sm=0)]
    its = {}
    for u in range(1, 9):
        its[u] = iter_slots(u)
    last = iter_slots(32, qk=False, qk_b=False, sm_b=False)
    preload(flat(it0a))
    emit_program(it0a, flat(it0b), None)
    a.nop(16)
    S0 = VS
    a('v_max3_f32 v%d, v%d, v%d, v%d' % (T0, S0, S0 + 1, S0 + 2))
    for i in range(3, 15, 2):
        a('v_max3_f32 v%d, v%d, v%d, v%d' % (T0, T0, S0 + i, S0 + i + 1))
    a('v_max_f32 v%d, v%d, v%d' % (T0, T0, S0 + 15))
    a('v_mov_b32 v%d, v%d' % (T1, T0))
    a('s_nop 1')
    a('v_permlane32_swap_b32 v%d, v%d' % (T1, T0))
    a('v_max_f32 v%d, v%d, v%d' % (T0, T0, T1))
    for i in range(16):
        a('v_sub_f32 v%d, v%d, v%d' % (S0 + i, S0 + i, T0))
        a('v_sub_f32 v%d, 0, v%d' % (VC + i, T0))
    a('s_nop 1')
    emit_program(it0b, flat(its[1]), mk_barrier(3))
    for u in range(1, 4):
        emit_program(its[u], flat(its[u + 1]), mk_barrier((u + 3) % NS))
    a('s_mov_b32 s27, 7')
    a.label(L + 'loop')
    q_at_top = len(state['q'])
    pend_top = list(state['pend'])
    for u in range(4, 8):
        emit_program(its[u], flat(its[u + 1]), mk_barrier((u + 3) % NS))
    assert len(state['q']) == q_at_top and pend_top == state['pend'], (q_at_top, len(state['q']), pend_top, state['pend'])
    a('s_sub_u32 s27, s27, 1')
    a('s_cmp_lg_u32 s27, 0')
    a('s_cbranch_scc1 %sloop' % L)
    a('s_waitcnt lgkmcnt(0)')
    state['q'] = []
    preload(flat(last))
    emit_program(last, [], None)
    a('s_waitcnt vmcnt(0)')
    a.nop(16)
    a('v_mov_b32 v%d, v%d' % (T1, VLS))
    a('s_nop 1')
    a('v_permlane32_swap_b32 v%d, v%d' % (T1, VLS))
    a('v_add_f32 v%d, v%d, v%d' % (T0, T1, VLS))
    a('v_rcp_f32 v%d, v%d' % (T0, T0))
    a('s_nop 0')
    for db in range(4):
        o = VO_ + 16 * db
        P = VS + 8 * db
        for i in range(16):
            a('v_mul_f32 v%d, v%d, v%d' % (o + i, o + i, T0))
        for i in range(8):
            a('v_cvt_pk_bf16_f32 v%d, v%d, v%d' % (P + i, o + 2 * i, o + 2 * i + 1))
        a('s_nop 1')
        a('v_permlane32_swap_b32 v%d, v%d' % (P + 0, P + 2))
        a('v_permlane32_swap_b32 v%d, v%d' % (P + 1, P + 3))
        a('v_permlane32_swap_b32 v%d, v%d' % (P + 4, P + 6))
        a('v_permlane32_swap_b32 v%d, v%d' % (P + 5, P + 7))
        a('buffer_store_dwordx4 v[%d:%d], v%d, s[20:23], 0 offen offset:%d' % (P, P + 3, VQA, db * 64))
        a('buffer_store_dwordx4 v[%d:%d], v%d, s[20:23], 0 offen offset:%d' % (P + 4, P + 7, VQA, db * 64 + 32))
    a.label(L + 'done')
    a('s_endpgm')
    for par in range(2):
        a.brk()
        a.label('%srare%d' % (L, par))
        cur, nx, P = VS + 16 * par, VS + 16 * (1 - par), VP + 8 * par
        a.nop(16)
        a('v_max3_f32 v%d, v%d, v%d, v%d' % (T0, cur, cur + 1, cur + 2))
        for i in range(3, 15, 2):
            a('v_max3_f32 v%d, v%d, v%d, v%d' % (T0, T0, cur + i, cur + i + 1))
        a('v_max_f32 v%d, v%d, v%d' % (T0, T0, cur + 15))
        a('v_mov_b32 v%d, v%d' % (T1, T0))
        a('s_nop 1')
        a('v_permlane32_swap_b32 v%d, v%d' % (T1, T0))
        a('v_max3_f32 v%d, v%d, v%d, 0' % (T0, T0, T1))
        a('v_sub_f32 v%d, 0, v%d' % (T1, T0))
        a('v_exp_f32 v%d, v%d' % (T1, T1))
        for i in range(16):
            a('v_sub_f32 v%d, v%d, v%d' % (VC + i, VC + i, T0))
            a('v_sub_f32 v%d, v%d, v%d' % (cur + i, cur + i, T0))
            a('v_sub_f32 v%d, v%d, v%d' % (nx + i, nx + i, T0))
        for i in range(64):
            a('v_mul_f32 v%d, v%d, v%d' % (VO_ + i, VO_ + i, T1))
        a('v_mul_f32 v%d, v%d, v%d' % (VLS, VLS, T1))
        for g in sm_groups(par):
            for t in g:
                a(t)
        a('s_nop 1')
        a('s_setpc_b64 s[38:39]')
    kernel_end(a, name, 224, 48)


def gen_g2(a):
    name = 'g2_kernel'
    L = 'L_g2_'
    XST = 32 * 1040
    WOFF = XST
    STG = XST + 32768
    kernel_begin(a, name)
    a('s_cmp_ge_u32 s2, 256')
    a('s_cbranch_scc1 %sdone' % L)
    a('s_load_dwordx2 s[4:5], s[0:1], %d' % KA_WS)
    a('s_load_dwordx2 s[6:7], s[0:1], %d' % KA_WO)
    a('s_load_dwordx2 s[28:29], s[0:1], %d' % KA_WD)
    a('s_and_b32 s3, s2, 7')
    a('s_lshl_b32 s3, s3, 4')
    a('s_bfe_u32 s30, s2, 0x40003')
    a('s_add_u32 s3, s3, s30')
    a('s_lshr_b32 s30, s3, 3')
    a('s_and_b32 s31, s3, 7')
    a('s_lshr_b32 s40, s2, 7')
    VL, VW = 200, 201
    VXO, VWO = 202, 203
    VXA = 204
    VWA = 206
    T0, T1, T2, T3 = 210, 211, 212, 213
    a('v_and_b32 v%d, 63, v0' % VL)
    a('v_lshrrev_b32 v%d, 6, v0' % VW)
    a('s_nop 0')
    a('v_readfirstlane_b32 s32, v%d' % VW)
    a('s_waitcnt lgkmcnt(0)')
    a('s_mov_b32 s41, 8192')
    a('s_mov_b32 s42, 32')
    a('s_mov_b32 s43, 0x%x' % WS_O)
    a('s_mov_b32 s44, 0x%x' % (16 * MB))
    a('s_mov_b32 s45, 0x%x' % WS_S)
    a('s_mov_b32 s12, s6')
    a('s_mov_b32 s13, s7')
    a('s_mov_b32 s14, 0x%x' % (4096 * 2048))
    a('s_cmp_eq_u32 s40, 0')
    a('s_cbranch_scc1 %ssel' % L)
    a('s_mov_b32 s41, %d' % (FF * 2))
    a('s_mov_b32 s42, 28')
    a('s_mov_b32 s43, 0x%x' % WS_H)
    a('s_mov_b32 s44, 0x%x' % (S_TOK * FF * 2))
    a('s_mov_b32 s45, 0x%x' % WS_G)
    a('s_mov_b32 s12, s28')
    a('s_mov_b32 s13, s29')
    a('s_mov_b32 s14, 0x%x' % (FF * 2048))
    a.label(L + 'sel')
    a('s_and_b32 s13, s13, 0xffff')
    a('s_mov_b32 s15, 0x00020000')
    a('s_add_u32 s8, s4, s43')
    a('s_addc_u32 s9, s5, 0')
    a('s_and_b32 s9, s9, 0xffff')
    a('s_mov_b32 s10, s44')
    a('s_mov_b32 s11, 0x00020000')
    a('s_add_u32 s20, s4, s45')
    a('s_addc_u32 s21, s5, 0')
    a('s_and_b32 s21, s21, 0xffff')
    a('s_mov_b32 s22, 0x%x' % (4 * MB))
    a('s_mov_b32 s23, 0x00020000')
    a('v_lshrrev_b32 v%d, 4, v%d' % (T0, VL))
    a('v_and_b32 v%d, 15, v%d' % (T1, VL))
    a('v_lshlrev_b32 v%d, 2, v%d' % (T2, T0))
    a('v_xor_b32 v%d, v%d, v%d' % (T1, T1, T2))
    a('v_lshl_add_u32 v%d, v%d, 2, v%d' % (T0, VW, T0))
    a('v_lshlrev_b32 v%d, 11, v%d' % (T2, T0))
    a('v_lshl_add_u32 v%d, v%d, 4, v%d' % (VWO, T1, T2))
    a('s_lshl_b32 s33, s30, 7')
    a('v_add_u32 v%d, s33, v%d' % (T0, T0))
    a('v_mul_lo_u32 v%d, v%d, s41' % (T0, T0))
    a('v_lshl_add_u32 v%d, v%d, 4, v%d' % (VXO, T1, T0))
    a('v_bfe_u32 v%d, v%d, 2, 3' % (T0, VL))
    a('v_bfe_u32 v%d, v%d, 1, 1' % (T1, VW))
    a('v_lshl_add_u32 v%d, v%d, 4, v%d' % (T0, T1, T0))
    a('v_mul_u32_u24 v%d, 1040, v%d' % (T0, T0))
    a('v_and_b32 v%d, 3, v%d' % (T1, VL))
    a('v_lshl_add_u32 v%d, v%d, 8, v%d' % (T0, T1, T0))
    a('v_lshrrev_b32 v%d, 5, v%d' % (T2, VL))
    a('v_lshl_add_u32 v%d, v%d, 4, v%d' % (T0, T2, T0))
    a('v_lshrrev_b32 v%d, 2, v%d' % (T2, VW))
    a('v_lshlrev_b32 v%d, 1, v%d' % (T2, T2))
    a('v_xor_b32 v%d, v%d, v%d' % (T1, T1, T2))
    for kk in range(2):
        a('v_xor_b32 v%d, %d, v%d' % (T2, kk, T1))
        a('v_lshl_add_u32 v%d, v%d, 6, v%d' % (VXA + kk, T2, T0))
    a('v_bfe_u32 v%d, v%d, 2, 2' % (T0, VL))
    a('v_lshrrev_b32 v%d, 5, v%d' % (T1, VL))
    a('v_lshl_add_u32 v%d, v%d, 3, v%d' % (T1, T1, T0))
    a('v_lshrrev_b32 v%d, 2, v%d' % (T2, VW))
    a('v_lshl_add_u32 v%d, v%d, 6, v%d' % (T1, T2, T1))
    a('v_lshlrev_b32 v%d, 8, v%d' % (T1, T1))
    a('v_bfe_u32 v%d, v%d, 4, 1' % (T2, VL))
    a('v_lshl_add_u32 v%d, v%d, 5, v%d' % (T1, T2, T1))
    a('v_bfe_u32 v%d, v%d, 1, 1' % (T2, VL))
    a('v_lshl_add_u32 v%d, v%d, 4, v%d' % (T1, T2, T1))
    a('v_and_b32 v%d, 1, v%d' % (T2, VL))
    a('v_lshl_add_u32 v%d, v%d, 3, v%d' % (T1, T2, T1))
    a('v_add_u32 v%d, 0x%x, v%d' % (T1, WOFF, T1))
    a('v_and_b32 v%d, 1, v%d' % (T2, VW))
    a('v_lshlrev_b32 v%d, 1, v%d' % (T2, T2))
    a('v_xor_b32 v%d, v%d, v%d' % (T0, T0, T2))
    for nb in range(2):
        a('v_xor_b32 v%d, %d, v%d' % (T2, nb, T0))
        a('v_lshl_add_u32 v%d, v%d, 6, v%d' % (VWA + nb, T2, T1))
    a('s_mov_b32 s24, 0')
    a('s_lshl_b32 s25, s31, 8')
    a('s_mul_i32 s26, s32, 1040')
    a('s_lshl_b32 s34, s32, 10')
    a('s_add_u32 s34, s34, %d' % WOFF)
    a('s_lshl_b32 s46, s41, 5')
    a('s_mov_b32 s47, 0')

    def dma_list():
        out = []
        for j in range(4):
            pre = 's_mov_b32 s35, s24' if j == 0 else 's_add_u32 s35, s35, s46'
            out.append('s_add_u32 s37, s26, s47\ns_add_u32 m0, s37, %d\n%s\nbuffer_load_dwordx4 v%d, s[8:11], s35 offen lds'
                       % (j * 8320, pre, VXO))
        for j in range(4):
            out.append('s_add_u32 s37, s34, s47\ns_add_u32 m0, s37, %d\ns_add_u32 s35, s25, %d\nbuffer_load_dwordx4 v%d, s[12:15], s35 offen lds'
                       % (j * 8192, j * 32 * 2048, VWO))
        return out

    def advance():
        a('s_add_u32 s24, s24, 256')
        a('s_add_u32 s25, s25, %d' % (128 * 2048))
        a('s_sub_u32 s47, %d, s47' % STG)

    FA, FB = 64, 80

    def reads(ks, F, buf):
        o = buf * STG
        out = []
        for nb in range(2):
            out.append('ds_read_b64_tr_b16 v[%d:%d], v%d offset:%d' % (F + 4 * nb, F + 4 * nb + 1, VWA + nb, o + ks * 4096))
            out.append('ds_read_b64_tr_b16 v[%d:%d], v%d offset:%d' % (F + 4 * nb + 2, F + 4 * nb + 3, VWA + nb, o + ks * 4096 + 1024))
        for tb in range(2):
            out.append('ds_read_b128 v[%d:%d], v%d offset:%d' % (F + 8 + 4 * tb, F + 11 + 4 * tb, VXA + (ks >> 1), o + tb * 8320 + (ks & 1) * 32))
        return [out[0], out[1], out[4], out[2], out[3], out[5]]

    def mf(F, first=False):
        out = []
        for tb in range(2):
            for nb in range(2):
                acc = nb * 32 + tb * 16
                c = '0' if first else 'v[%d:%d]' % (acc, acc + 15)
                out.append('v_mfma_f32_32x32x16_bf16 v[%d:%d], v[%d:%d], v[%d:%d], %s'
                           % (acc, acc + 15, F + 4 * nb, F + 4 * nb + 3, F + 8 + 4 * tb, F + 11 + 4 * tb, c))
        return out

    def toggle(sign):
        op = 'v_add_u32 v%d, 0x%x, v%d' if sign > 0 else 'v_subrev_u32 v%d, 0x%x, v%d'
        return [op % (r, STG, r) for r in (VXA, VXA + 1, VWA, VWA + 1)]

    for g in dma_list():
        a(g)
    advance()
    a('s_waitcnt vmcnt(0)')
    a('s_barrier')
    for g in dma_list():
        a(g)
    advance()
    for r in reads(0, FA, 0):
        a(r)

    def stage(first, dma, nxt, sign):
        for ks in range(3):
            a('s_waitcnt lgkmcnt(0)')
            cur, oth = (FA, FB) if ks % 2 == 0 else (FB, FA)
            rd = reads(ks + 1, oth, 0)
            m = mf(cur, first and ks == 0)
            for i in range(4):
                a(m[i])
                if i < 3:
                    a(rd[2 * i]); a(rd[2 * i + 1])
        a('s_waitcnt lgkmcnt(0)')
        m = mf(FB)
        if nxt:
            a('s_waitcnt vmcnt(0)')
            a('s_barrier')
            for t in toggle(sign):
                a(t)
            rd = reads(0, FA, 0)
            dl = dma_list() if dma else []
            for i in range(4):
                a(m[i])
                if i < 3:
                    a(rd[2 * i]); a(rd[2 * i + 1])
                if dl:
                    a(dl[2 * i]); a(dl[2 * i + 1])
            if dma:
                advance()
        else:
            for i in range(4):
                a(m[i])

    stage(True, True, True, +1)
    stage(False, True, True, -1)
    a('s_sub_u32 s27, s42, 4')
    a('s_lshr_b32 s27, s27, 1')
    a.label(L + 'loop')
    stage(False, True, True, +1)
    stage(False, True, True, -1)
    a('s_sub_u32 s27, s27, 1')
    a('s_cmp_lg_u32 s27, 0')
    a('s_cbranch_scc1 %sloop' % L)
    stage(False, False, True, +1)
    stage(False, False, False, -1)
    a.nop(16)
    a('s_barrier')
    a('v_lshlrev_b32 v%d, 4, v%d' % (T0, VL))
    a('v_lshl_add_u32 v%d, v%d, 13, v%d' % (T1, VW, T0))
    a('v_xor_b32 v%d, 4, v%d' % (T2, VW))
    a('v_lshl_add_u32 v%d, v%d, 13, v%d' % (T2, T2, T0))
    a('s_cmp_ge_u32 s32, 4')
    a('s_cbranch_scc1 %shi' % L)
    for i in range(8):
        a('ds_write_b128 v%d, v[%d:%d] offset:%d' % (T1, 32 + 4 * i, 35 + 4 * i, i * 1024))
    a('s_waitcnt lgkmcnt(0)')
    a('s_barrier')
    for i in range(8):
        a('ds_read_b128 v[%d:%d], v%d offset:%d' % (64 + 4 * i, 67 + 4 * i, T2, i * 1024))
    a('s_waitcnt lgkmcnt(0)')
    for i in range(32):
        a('v_add_f32 v%d, v%d, v%d' % (i, i, 64 + i))
    a('s_branch %sjoin' % L)
    a.label(L + 'hi')
    a.brk()
    for i in range(8):
        a('ds_write_b128 v%d, v[%d:%d] offset:%d' % (T1, 4 * i, 3 + 4 * i, i * 1024))
    a('s_waitcnt lgkmcnt(0)')
    a('s_barrier')
    for i in range(8):
        a('ds_read_b128 v[%d:%d], v%d offset:%d' % (64 + 4 * i, 67 + 4 * i, T2, i * 1024))
    a('s_waitcnt lgkmcnt(0)')
    for i in range(32):
        a('v_add_f32 v%d, v%d, v%d' % (i, 32 + i, 64 + i))
    a.label(L + 'join')
    a.brk()
    VO = 204
    a('v_and_b32 v%d, 31, v%d' % (T0, VL))
    a('v_bfe_u32 v%d, v%d, 1, 1' % (T1, VW))
    a('v_lshl_add_u32 v%d, v%d, 6, v%d' % (T0, T1, T0))
    a('s_lshl_b32 s33, s30, 7')
    a('v_add_u32 v%d, s33, v%d' % (T0, T0))
    a('v_lshlrev_b32 v%d, 11, v%d' % (T0, T0))
    a('v_and_b32 v%d, 1, v%d' % (T1, VW))
    a('v_lshl_add_u32 v%d, v%d, 7, v%d' % (T0, T1, T0))
    a('v_lshrrev_b32 v%d, 2, v%d' % (T1, VW))
    a('v_lshl_add_u32 v%d, v%d, 6, v%d' % (T0, T1, T0))
    a('v_lshrrev_b32 v%d, 5, v%d' % (T1, VL))
    a('v_lshl_add_u32 v%d, v%d, 4, v%d' % (T0, T1, T0))
    a('s_lshl_b32 s33, s31, 8')
    a('v_add_u32 v%d, s33, v%d' % (VO, T0))
    a('s_cmp_eq_u32 s40, 0')
    a('s_cbranch_scc1 %snosilu' % L)
    a('s_mov_b32 s36, 0x%x' % f32bits(-math.log2(math.e)))
    for i in range(0, 32, 2):
        a('v_cvt_pk_bf16_f32 v%d, v%d, v%d' % (T0, i, i + 1))
        a('v_lshlrev_b32 v%d, 16, v%d' % (i, T0))
        a('v_and_b32 v%d, 0xffff0000, v%d' % (i + 1, T0))
        for r in (i, i + 1):
            a('v_mul_f32 v%d, s36, v%d' % (T1, r))
            a('v_exp_f32 v%d, v%d' % (T1, T1))
            a('s_nop 0')
            a('v_add_f32 v%d, 1.0, v%d' % (T1, T1))
            a('v_rcp_f32 v%d, v%d' % (T1, T1))
            a('s_nop 0')
            a('v_mul_f32 v%d, v%d, v%d' % (r, r, T1))
    a.label(L + 'nosilu')
    a.brk()
    for tb in range(2):
        src, P = tb * 16, 64 + tb * 8
        a('s_mov_b32 s37, %d' % (tb * 32 * 2048))
        for i in range(8):
            a('v_cvt_pk_bf16_f32 v%d, v%d, v%d' % (P + i, src + 2 * i, src + 2 * i + 1))
        a('s_nop 1')
        a('v_permlane32_swap_b32 v%d, v%d' % (P + 0, P + 2))
        a('v_permlane32_swap_b32 v%d, v%d' % (P + 1, P + 3))
        a('v_permlane32_swap_b32 v%d, v%d' % (P + 4, P + 6))
        a('v_permlane32_swap_b32 v%d, v%d' % (P + 5, P + 7))
        a('buffer_store_dwordx4 v[%d:%d], v%d, s[20:23], s37 offen offset:0' % (P, P + 3, VO))
        a('buffer_store_dwordx4 v[%d:%d], v%d, s[20:23], s37 offen offset:32' % (P + 4, P + 7, VO))
    a.label(L + 'done')
    a('s_endpgm')
    kernel_end(a, name, 216, 48)
    return 2 * STG


def gen_comb(a):
    name = 'comb_kernel'
    kernel_begin(a, name)
    a('s_cmp_ge_u32 s2, 1024')
    a('s_cbranch_scc1 L_cb_done')
    a('s_load_dwordx2 s[4:5], s[0:1], %d' % KA_X)
    a('s_load_dwordx2 s[6:7], s[0:1], %d' % KA_WS)
    a('s_load_dwordx2 s[24:25], s[0:1], %d' % KA_OUT)
    a('s_lshl_b32 s3, s2, 12')
    a('v_lshl_add_u32 v1, v0, 4, s3')
    a('s_waitcnt lgkmcnt(0)')
    srd(a, 8, 4, 0, 4 * MB)
    srd(a, 12, 6, WS_S, 4 * MB)
    srd(a, 16, 6, WS_G, 4 * MB)
    srd(a, 20, 24, 0, 4 * MB)
    a('buffer_load_dwordx4 v[4:7], v1, s[8:11], 0 offen')
    a('buffer_load_dwordx4 v[8:11], v1, s[12:15], 0 offen')
    a('buffer_load_dwordx4 v[12:15], v1, s[16:19], 0 offen')
    a('s_waitcnt vmcnt(0)')
    for i in range(4):
        a('v_lshlrev_b32 v16, 16, v%d' % (8 + i))
        a('v_and_b32 v17, 0xffff0000, v%d' % (8 + i))
        a('v_lshlrev_b32 v18, 16, v%d' % (12 + i))
        a('v_and_b32 v19, 0xffff0000, v%d' % (12 + i))
        a('v_mul_f32 v16, v16, v18')
        a('v_mul_f32 v17, v17, v19')
        a('v_cvt_pk_bf16_f32 v16, v16, v17')
        a('v_and_b32 v17, 0xffff0000, v16')
        a('v_lshlrev_b32 v16, 16, v16')
        a('v_lshlrev_b32 v18, 16, v%d' % (4 + i))
        a('v_and_b32 v19, 0xffff0000, v%d' % (4 + i))
        a('v_add_f32 v16, v16, v18')
        a('v_add_f32 v17, v17, v19')
        a('v_cvt_pk_bf16_f32 v%d, v16, v17' % (4 + i))
    a('buffer_store_dwordx4 v[4:7], v1, s[20:23], 0 offen')
    a.label('L_cb_done')
    a('s_endpgm')
    kernel_end(a, name, 24, 32)


def main(out):
    a = Asm()
    hdr = open(os.path.join(os.path.dirname(os.path.abspath(__file__)), '..', 'cdna_kernels', NAME + '.s.ref')).read().split('\n')
    head = [l for l in hdr if l.startswith(';') and '@launch' not in l and 'Override launch' not in l and 'grid=ceil' not in l]
    body = Asm()
    gen_ln(body)
    gen_g1(body, 'gu')
    gen_g1(body, 'q')
    gen_attn(body)
    g2lds = gen_g2(body)
    gen_comb(body)
    probs = body.check()
    for p in probs:
        print('HAZARD:', p)
    launches = [
        ('ln_kernel', 512, 256, 0),
        ('g1gu_kernel', 224, 512, 131072),
        ('g1q_kernel', 128, 512, 131072),
        ('attn_kernel', 256, 512, 4 * 16640 + 4 * 16384),
        ('g2_kernel', 256, 512, g2lds),
        ('comb_kernel', 1024, 256, 0),
    ]
    txt = '\n'.join(head) + '\n'
    for k, g, b, l in launches:
        txt += '; @launch kernel=%s grid=(%d,1,1) block=(%d,1,1) lds=%d\n' % (k, g, b, l)
    txt += '.amdgcn_target "amdgcn-amd-amdhsa--gfx950"\n'
    txt += body.text()
    open(out, 'w').write(txt)
    print('wrote', out, len(txt), 'bytes;', len(probs), 'hazards')


if __name__ == '__main__':
    main(sys.argv[1] if len(sys.argv) > 1 else os.path.join(os.path.dirname(os.path.abspath(__file__)), '..', 'cdna_kernels', NAME + '.s'))
```

```python
import sys, os, struct, math
sys.path.insert(0, os.path.dirname(os.path.abspath(__file__)))
from emit import Asm

NAME = 'recurrent_scan__mha_block_cached__glu_gated_reglu__prompt'
MB = 1 << 20
WS_XN, WS_Q, WS_H, WS_O, WS_S, WS_G = 0, 4 * MB, 20 * MB, 36 * MB, 52 * MB, 56 * MB
KA_X, KA_K, KA_V, KA_WQ, KA_WO, KA_BX, KA_WG, KA_WU, KA_WD, KA_OUT, KA_DBG, KA_WS = [8 * i for i in range(12)]
S_TOK, D_MODEL, NH, DH, FF = 2048, 1024, 32, 128, 3584


def f32bits(x):
    return struct.unpack('<I', struct.pack('<f', x))[0]


QSCALE = math.log2(math.e) / math.sqrt(128.0)
EXP = set(os.environ.get('EXP', '').split(','))


def kernel_begin(a, name):
    a.raw('.text')
    a.raw('.globl %s' % name)
    a.raw('.p2align 8')
    a.raw('.type %s,@function' % name)
    a.label(name)
    a.brk()


def kernel_end(a, name, vgpr, sgpr=102, accum=None):
    if accum is None:
        accum = (vgpr + 3) // 4 * 4
    a.raw('.section .rodata,"a"')
    a.raw('.p2align 6')
    a.raw('.amdhsa_kernel %s' % name)
    a.raw('  .amdhsa_next_free_vgpr %d' % vgpr)
    a.raw('  .amdhsa_next_free_sgpr %d' % sgpr)
    a.raw('  .amdhsa_accum_offset %d' % accum)
    a.raw('  .amdhsa_group_segment_fixed_size 0')
    a.raw('  .amdhsa_kernarg_size 96')
    a.raw('  .amdhsa_user_sgpr_count 2')
    a.raw('  .amdhsa_user_sgpr_kernarg_segment_ptr 1')
    a.raw('  .amdhsa_system_sgpr_workgroup_id_x 1')
    a.raw('  .amdhsa_float_denorm_mode_32 3')
    a.raw('.end_amdhsa_kernel')


def stamp_begin(a):
    if 'stamp' not in EXP:
        return
    a('s_memtime s[60:61]')
    a('s_memrealtime s[62:63]')
    a('s_load_dwordx2 s[68:69], s[0:1], %d' % KA_DBG)
    a('s_waitcnt lgkmcnt(0)')


def stamp_end(a, lab):
    if 'stamp' not in EXP:
        return
    a('s_memtime s[64:65]')
    a('s_memrealtime s[66:67]')
    a('s_waitcnt lgkmcnt(0)')
    a('s_cmp_lg_u32 s2, 5')
    a('s_cbranch_scc1 %s' % lab)
    a('s_sub_u32 s64, s64, s60')
    a('s_sub_u32 s66, s66, s62')
    a('s_mov_b32 s72, s68')
    a('s_and_b32 s73, s69, 0xffff')
    a('s_mov_b32 s74, 256')
    a('s_mov_b32 s75, 0x00020000')
    a('v_mov_b32 v2, s64')
    a('v_mov_b32 v3, s66')
    a('v_lshlrev_b32 v1, 3, v0')
    a('buffer_store_dwordx2 v[2:3], v1, s[72:75], 0 offen')
    a.label(lab)


def srd(a, d, base, off, size):
    if off:
        a('s_add_u32 s%d, s%d, 0x%x' % (d, base, off))
        a('s_addc_u32 s%d, s%d, 0' % (d + 1, base + 1))
    else:
        a('s_mov_b32 s%d, s%d' % (d, base))
        a('s_mov_b32 s%d, s%d' % (d + 1, base + 1))
    a('s_and_b32 s%d, s%d, 0xffff' % (d + 1, d + 1))
    a('s_mov_b32 s%d, 0x%x' % (d + 2, size))
    a('s_mov_b32 s%d, 0x00020000' % (d + 3))


def wave_sum(a, v, t, sbase):
    for mod in ('quad_perm:[1,0,3,2]', 'quad_perm:[2,3,0,1]', 'row_half_mirror', 'row_mirror'):
        a('s_nop 1')
        a('v_add_f32_dpp v%d, v%d, v%d %s row_mask:0xf bank_mask:0xf' % (t, v, v, mod))
        a('v_mov_b32 v%d, v%d' % (v, t))
    a('s_nop 0')
    for i in range(4):
        a('v_readlane_b32 s%d, v%d, %d' % (sbase + i, v, 16 * i))
    a('s_nop 1')
    a('v_mov_b32 v%d, s%d' % (v, sbase))
    for i in range(1, 4):
        a('v_add_f32 v%d, s%d, v%d' % (v, sbase + i, v))


def bf16_round(a, v, t=None):
    a('v_cvt_pk_bf16_f32 v%d, v%d, v%d' % (v, v, v))
    a('v_lshlrev_b32 v%d, 16, v%d' % (v, v))


def gen_ln(a):
    name = 'ln_kernel'
    kernel_begin(a, name)
    a('s_cmp_ge_u32 s2, 512')
    a('s_cbranch_scc1 L_ln_done')
    a('s_load_dwordx2 s[4:5], s[0:1], %d' % KA_X)
    a('s_load_dwordx2 s[6:7], s[0:1], %d' % KA_WS)
    a('v_and_b32 v1, 63, v0')
    a('v_lshrrev_b32 v2, 6, v0')
    a('s_lshl_b32 s3, s2, 2')
    a('v_add_u32 v2, s3, v2')
    a('v_lshlrev_b32 v2, 11, v2')
    a('v_lshl_add_u32 v2, v1, 4, v2')
    a('s_waitcnt lgkmcnt(0)')
    srd(a, 8, 4, 0, 4 * MB)
    srd(a, 12, 6, WS_XN, 4 * MB)
    a('buffer_load_dwordx4 v[4:7], v2, s[8:11], 0 offen')
    a('buffer_load_dwordx4 v[8:11], v2, s[8:11], 0 offen offset:1024')
    a('s_waitcnt vmcnt(0)')
    for i in range(8):
        a('v_lshlrev_b32 v%d, 16, v%d' % (16 + 2 * i, 4 + i))
        a('v_and_b32 v%d, 0xffff0000, v%d' % (17 + 2 * i, 4 + i))
    a('v_add_f32 v32, v16, v17')
    for i in range(2, 16):
        a('v_add_f32 v32, v32, v%d' % (16 + i))
    wave_sum(a, 32, 33, 20)
    a('v_mul_f32 v32, 0x%x, v32' % f32bits(1.0 / 1024))
    a('v_sub_f32 v34, v16, v32')
    a('v_mul_f32 v35, v34, v34')
    for i in range(1, 16):
        a('v_sub_f32 v34, v%d, v32' % (16 + i))
        a('v_fmac_f32 v35, v34, v34')
    wave_sum(a, 35, 33, 20)
    a('v_mul_f32 v35, 0x%x, v35' % f32bits(1.0 / 1024))
    bf16_round(a, 32)
    bf16_round(a, 35)
    a('v_add_f32 v35, 0x%x, v35' % f32bits(1e-5))
    bf16_round(a, 35)
    a('v_sqrt_f32 v35, v35')
    a('s_nop 0')
    bf16_round(a, 35)
    a('v_rcp_f32 v36, v35')
    a('s_nop 0')
    for i in range(16):
        r = 16 + i
        a('v_sub_f32 v%d, v%d, v32' % (r, r))
        bf16_round(a, r)
        a('v_mul_f32 v37, v%d, v36' % r)
        a('v_fma_f32 v38, -v37, v35, v%d' % r)
        a('v_fma_f32 v%d, v38, v36, v37' % r)
    for i in range(8):
        a('v_cvt_pk_bf16_f32 v%d, v%d, v%d' % (4 + i, 16 + 2 * i, 17 + 2 * i))
    a('buffer_store_dwordx4 v[4:7], v2, s[12:15], 0 offen')
    a('buffer_store_dwordx4 v[8:11], v2, s[12:15], 0 offen offset:1024')
    a.label('L_ln_done')
    a('s_endpgm')
    kernel_end(a, name, 40, 32)


def interleave(a, mfmas, fillers, start=0):
    n = len(mfmas)
    slots = [[] for _ in range(n)]
    m = n - start
    for i, f in enumerate(fillers):
        slots[start + (i * m) // max(len(fillers), 1)].append(f)
    for i in range(n):
        a(mfmas[i])
        for f in slots[i]:
            a(f)


def gen_g1(a, mode):
    name = 'g1%s_kernel' % mode
    L = 'L_g1%s_' % mode
    if mode == 'gu':
        NT, LDW, NW = 28, FF * 2, 224
        WSIZE = D_MODEL * FF * 2
    else:
        NT, LDW, NW = 16, 4096 * 2, 128
        WSIZE = D_MODEL * 4096 * 2
    per_xcd = NW // 8
    kernel_begin(a, name)
    a('s_cmp_ge_u32 s2, %d' % NW)
    a('s_cbranch_scc1 %sdone' % L)
    stamp_begin(a)
    a('s_load_dwordx2 s[4:5], s[0:1], %d' % KA_WS)
    a('s_load_dwordx2 s[6:7], s[0:1], %d' % (KA_WG if mode == 'gu' else KA_WQ))
    a('s_load_dwordx2 s[28:29], s[0:1], %d' % (KA_WU if mode == 'gu' else KA_WQ))
    a('s_and_b32 s3, s2, 7')
    a('s_mul_i32 s3, s3, %d' % per_xcd)
    a('s_lshr_b32 s30, s2, 3')
    a('s_add_u32 s3, s3, s30')
    a('s_lshr_b32 s31, s3, 3')
    a('s_and_b32 s30, s3, 7')
    VL, VW = 200, 201
    a('v_and_b32 v%d, 63, v0' % VL)
    a('v_lshrrev_b32 v%d, 6, v0' % VW)
    a('s_nop 0')
    a('v_readfirstlane_b32 s32, v%d' % VW)
    VXO, VWO = 202, 203
    VXA = 204
    VWA = 208
    T0, T1, T2, T3 = 210, 211, 212, 213
    a('v_lshrrev_b32 v%d, 3, v%d' % (T0, VL))
    a('v_and_b32 v%d, 7, v%d' % (T1, VL))
    a('v_lshrrev_b32 v%d, 1, v%d' % (T2, T0))
    a('v_and_b32 v%d, 1, v%d' % (T3, VW))
    a('v_lshl_add_u32 v%d, v%d, 2, v%d' % (T2, T3, T2))
    a('v_xor_b32 v%d, v%d, v%d' % (T1, T1, T2))
    a('v_lshl_add_u32 v%d, v%d, 3, v%d' % (T0, VW, T0))
    a('s_lshl_b32 s33, s30, 8')
    a('v_add_u32 v%d, s33, v%d' % (T0, T0))
    a('v_lshlrev_b32 v%d, 11, v%d' % (T0, T0))
    a('v_lshl_add_u32 v%d, v%d, 4, v%d' % (VXO, T1, T0))
    a('v_lshrrev_b32 v%d, 4, v%d' % (T0, VL))
    a('v_and_b32 v%d, 15, v%d' % (T1, VL))
    a('v_lshlrev_b32 v%d, 2, v%d' % (T2, T0))
    a('v_xor_b32 v%d, v%d, v%d' % (T1, T1, T2))
    a('v_lshl_add_u32 v%d, v%d, 2, v%d' % (T0, VW, T0))
    a('s_mov_b32 s33, %d' % LDW)
    a('v_mul_lo_u32 v%d, v%d, s33' % (T0, T0))
    a('v_lshl_add_u32 v%d, v%d, 4, v%d' % (VWO, T1, T0))
    a('v_and_b32 v%d, 31, v%d' % (T0, VL))
    a('v_lshrrev_b32 v%d, 2, v%d' % (T1, VW))
    a('v_lshl_add_u32 v%d, v%d, 7, v%d' % (T0, T1, T0))
    a('v_lshlrev_b32 v%d, 7, v%d' % (T0, T0))
    a('v_lshrrev_b32 v%d, 5, v%d' % (T1, VL))
    a('v_bfe_u32 v%d, v%d, 1, 3' % (T2, VL))
    a('v_xor_b32 v%d, v%d, v%d' % (T1, T1, T2))
    for ks in range(4):
        a('v_xor_b32 v%d, %d, v%d' % (T2, 2 * ks, T1))
        a('v_lshl_add_u32 v%d, v%d, 4, v%d' % (VXA + ks, T2, T0))
    a('v_bfe_u32 v%d, v%d, 2, 2' % (T0, VL))
    a('v_lshrrev_b32 v%d, 5, v%d' % (T1, VL))
    a('v_lshl_add_u32 v%d, v%d, 3, v%d' % (T1, T1, T0))
    a('v_lshlrev_b32 v%d, 8, v%d' % (T1, T1))
    a('v_and_b32 v%d, 3, v%d' % (T2, VW))
    a('v_xor_b32 v%d, v%d, v%d' % (T2, T2, T0))
    a('v_lshl_add_u32 v%d, v%d, 6, v%d' % (T1, T2, T1))
    a('v_bfe_u32 v%d, v%d, 4, 1' % (T2, VL))
    a('v_lshl_add_u32 v%d, v%d, 5, v%d' % (T1, T2, T1))
    a('v_bfe_u32 v%d, v%d, 1, 1' % (T2, VL))
    a('v_lshl_add_u32 v%d, v%d, 4, v%d' % (T1, T2, T1))
    a('v_and_b32 v%d, 1, v%d' % (T2, VL))
    a('v_lshl_add_u32 v%d, v%d, 3, v%d' % (T1, T2, T1))
    a('v_add_u32 v%d, 0x8000, v%d' % (VWA, T1))
    a('s_waitcnt lgkmcnt(0)')
    srd(a, 8, 4, WS_XN, 4 * MB)
    srd(a, 12, 6, 0, WSIZE)
    srd(a, 16, 28, 0, WSIZE)
    if mode == 'gu':
        srd(a, 20, 4, WS_H, S_TOK * FF * 2)
    else:
        srd(a, 20, 4, WS_Q, S_TOK * 4096 * 2)
    a('s_mov_b32 s24, 0')
    if mode == 'gu':
        a('s_lshl_b32 s25, s31, 8')
        a('s_mov_b32 s34, s25')
    else:
        a('s_lshl_b32 s25, s31, 9')
        a('s_add_u32 s34, s25, 256')
    a('s_lshl_b32 s26, s32, 10')

    def dma_list():
        out = []
        for j in range(4):
            out.append('s_add_u32 m0, s26, %d\ns_add_u32 s35, s24, %d\nbuffer_load_dwordx4 v%d, s[8:11], s35 offen lds'
                       % (j * 8192, j * 131072, VXO))
        for j in range(2):
            out.append('s_add_u32 m0, s26, %d\ns_add_u32 s35, s25, %d\nbuffer_load_dwordx4 v%d, s[12:15], s35 offen lds'
                       % (32768 + j * 8192, j * 32 * LDW, VWO))
            out.append('s_add_u32 m0, s26, %d\ns_add_u32 s35, s34, %d\nbuffer_load_dwordx4 v%d, s[16:19], s35 offen lds'
                       % (49152 + j * 8192, j * 32 * LDW, VWO))
        return out

    def advance():
        a('s_add_u32 s24, s24, 128')
        a('s_add_u32 s25, s25, %d' % (64 * LDW))
        a('s_add_u32 s34, s34, %d' % (64 * LDW))
        a('s_xor_b32 s26, s26, 0x10000')

    FA, FB = 128, 152

    def reads(ks, F):
        out = []
        out.append('ds_read_b64_tr_b16 v[%d:%d], v%d offset:%d' % (F, F + 1, VWA, ks * 4096))
        out.append('ds_read_b64_tr_b16 v[%d:%d], v%d offset:%d' % (F + 2, F + 3, VWA, ks * 4096 + 1024))
        out.append('ds_read_b128 v[%d:%d], v%d offset:%d' % (F + 8, F + 11, VXA + ks, 0))
        out.append('ds_read_b64_tr_b16 v[%d:%d], v%d offset:%d' % (F + 4, F + 5, VWA, 16384 + ks * 4096))
        out.append('ds_read_b64_tr_b16 v[%d:%d], v%d offset:%d' % (F + 6, F + 7, VWA, 16384 + ks * 4096 + 1024))
        for tb in range(1, 4):
            out.append('ds_read_b128 v[%d:%d], v%d offset:%d' % (F + 8 + 4 * tb, F + 11 + 4 * tb, VXA + ks, tb * 4096))
        return out

    def mf(F, first=False):
        out = []
        for tb in range(4):
            for nb in range(2):
                acc = nb * 64 + tb * 16
                c = '0' if first else 'v[%d:%d]' % (acc, acc + 15)
                out.append('v_mfma_f32_32x32x16_bf16 v[%d:%d], v[%d:%d], v[%d:%d], %s'
                           % (acc, acc + 15, F + 4 * nb, F + 4 * nb + 3, F + 8 + 4 * tb, F + 11 + 4 * tb, c))
        return out

    def toggle():
        return ['v_xor_b32 v%d, 0x10000, v%d' % (r, r) for r in (VXA, VXA + 1, VXA + 2, VXA + 3, VWA)]

    for g in dma_list():
        a(g)
    advance()
    a('s_waitcnt vmcnt(0)')
    a('s_barrier')
    for g in dma_list():
        a(g)
    advance()
    for r in reads(0, FA):
        a(r)

    def stage(first, dma, nxt):
        for ks in range(3):
            a('s_waitcnt lgkmcnt(0)')
            cur, oth = (FA, FB) if ks % 2 == 0 else (FB, FA)
            rd = reads(ks + 1, oth)
            m = mf(cur, first and ks == 0)
            fl = ['\n'.join(rd[2 * i:2 * i + 2]) for i in range(4)]
            for i in range(8):
                a(m[i])
                if i < 4:
                    a(fl[i])
        a('s_waitcnt lgkmcnt(0)')
        m = mf(FB)
        if 'g1_nodma' in EXP:
            dma = False
        if nxt:
            a('s_waitcnt vmcnt(0)')
            if 'g1_nobar' not in EXP:
                a('s_barrier')
            for t in toggle():
                a(t)
            rd = reads(0, FA)
            fl = ['\n'.join(rd[2 * i:2 * i + 2]) for i in range(4)]
            dl = dma_list() if dma else []
            for i in range(8):
                a(m[i])
                if i < 4:
                    a(fl[i])
                if dl:
                    a(dl[i])
            if dma:
                advance()
        else:
            for i in range(8):
                a(m[i])

    stage(True, True, True)
    a('s_mov_b32 s27, 13')
    a.label(L + 'loop')
    stage(False, True, True)
    a('s_sub_u32 s27, s27, 1')
    a('s_cmp_lg_u32 s27, 0')
    a('s_cbranch_scc1 %sloop' % L)
    stage(False, False, True)
    stage(False, False, False)
    a.nop(16)
    LDO = FF * 2 if mode == 'gu' else 8192
    VO = 204
    a('v_and_b32 v%d, 31, v%d' % (T0, VL))
    a('v_lshrrev_b32 v%d, 2, v%d' % (T1, VW))
    a('v_lshl_add_u32 v%d, v%d, 7, v%d' % (T0, T1, T0))
    a('s_lshl_b32 s33, s30, 8')
    a('v_add_u32 v%d, s33, v%d' % (T0, T0))
    a('s_mov_b32 s33, %d' % LDO)
    a('v_mul_lo_u32 v%d, v%d, s33' % (T0, T0))
    a('v_and_b32 v%d, 3, v%d' % (T1, VW))
    a('v_lshl_add_u32 v%d, v%d, 6, v%d' % (T0, T1, T0))
    a('v_lshrrev_b32 v%d, 5, v%d' % (T1, VL))
    a('v_lshl_add_u32 v%d, v%d, 4, v%d' % (T0, T1, T0))
    if mode == 'gu':
        a('s_lshl_b32 s33, s31, 8')
    else:
        a('s_lshl_b32 s33, s31, 9')
    a('v_add_u32 v%d, s33, v%d' % (VO, T0))
    a('s_mov_b32 s36, 0x%x' % f32bits(QSCALE))

    def pack_store(src, P, soff, imm):
        for i in range(8):
            a('v_cvt_pk_bf16_f32 v%d, v%d, v%d' % (P + i, src + 2 * i, src + 2 * i + 1))
        a('s_nop 1')
        a('v_permlane32_swap_b32 v%d, v%d' % (P + 0, P + 2))
        a('v_permlane32_swap_b32 v%d, v%d' % (P + 1, P + 3))
        a('v_permlane32_swap_b32 v%d, v%d' % (P + 4, P + 6))
        a('v_permlane32_swap_b32 v%d, v%d' % (P + 5, P + 7))
        a('buffer_store_dwordx4 v[%d:%d], v%d, s[20:23], %s offen offset:%d' % (P, P + 3, VO, soff, imm))
        a('buffer_store_dwordx4 v[%d:%d], v%d, s[20:23], %s offen offset:%d' % (P + 4, P + 7, VO, soff, imm + 32))

    for tb in range(4):
        a('s_mov_b32 s37, %d' % (tb * 32 * LDO))
        P = 128 + (tb % 2) * 16
        if mode == 'gu':
            g, u = tb * 16, 64 + tb * 16
            for i in range(16):
                a('v_max_f32 v%d, 0, v%d' % (g + i, g + i))
                a('v_mul_f32 v%d, v%d, v%d' % (g + i, g + i, u + i))
            pack_store(g, P, 's37', 0)
        else:
            for nb in range(2):
                g = nb * 64 + tb * 16
                for i in range(8):
                    r = g + 2 * i
                    a('v_cvt_pk_bf16_f32 v%d, v%d, v%d' % (T0, r, r + 1))
                    a('v_lshlrev_b32 v%d, 16, v%d' % (r, T0))
                    a('v_and_b32 v%d, 0xffff0000, v%d' % (r + 1, T0))
                    a('v_mul_f32 v%d, s36, v%d' % (r, r))
                    a('v_mul_f32 v%d, s36, v%d' % (r + 1, r + 1))
                pack_store(g, P + nb * 8, 's37', nb * 256)
    stamp_end(a, L + 'st')
    a.label(L + 'done')
    a('s_endpgm')
    kernel_end(a, name, 216, 80)


def gen_attn(a):
    name = 'attn_kernel'
    L = 'L_at_'
    R = 8
    NS = 4
    KST, VST = 16640, 16384
    VRING = NS * KST
    VO_, VQ, VS, VP, VC, VF = 0, 64, 96, 128, 144, 160
    VT = 192
    VPS, VLS = 196, 197
    VKA, VVA, VDO = 200, 204, 208
    VL, VW = 209, 210
    T0, T1, T2, T3 = 212, 213, 214, 215
    kernel_begin(a, name)
    a('s_cmp_ge_u32 s2, 256')
    a('s_cbranch_scc1 %sdone' % L)
    stamp_begin(a)
    a('s_load_dwordx2 s[4:5], s[0:1], %d' % KA_WS)
    a('s_load_dwordx2 s[6:7], s[0:1], %d' % KA_K)
    a('s_load_dwordx2 s[28:29], s[0:1], %d' % KA_V)
    a('s_and_b32 s3, s2, 7')
    a('s_lshl_b32 s3, s3, 2')
    a('s_bfe_u32 s30, s2, 0x20003')
    a('s_add_u32 s30, s30, s3')
    a('s_lshr_b32 s31, s2, 5')
    a('v_and_b32 v%d, 63, v0' % VL)
    a('v_lshrrev_b32 v%d, 6, v0' % VW)
    a('s_nop 0')
    a('v_readfirstlane_b32 s32, v%d' % VW)
    a('v_lshrrev_b32 v%d, 4, v%d' % (T0, VL))
    a('v_and_b32 v%d, 15, v%d' % (T1, VL))
    a('v_lshlrev_b32 v%d, 2, v%d' % (T2, T0))
    a('v_xor_b32 v%d, v%d, v%d' % (T1, T1, T2))
    a('v_lshl_add_u32 v%d, v%d, 2, v%d' % (T0, VW, T0))
    a('v_lshlrev_b32 v%d, 8, v%d' % (T0, T0))
    a('v_lshl_add_u32 v%d, v%d, 4, v%d' % (VDO, T1, T0))
    a('v_bfe_u32 v%d, v%d, 2, 3' % (T0, VL))
    a('v_mul_u32_u24 v%d, 1040, v%d' % (T0, T0))
    a('v_and_b32 v%d, 3, v%d' % (T1, VL))
    a('v_lshl_add_u32 v%d, v%d, 8, v%d' % (T0, T1, T0))
    a('v_lshrrev_b32 v%d, 5, v%d' % (T2, VL))
    a('v_lshl_add_u32 v%d, v%d, 4, v%d' % (T0, T2, T0))
    for kk in range(4):
        a('v_xor_b32 v%d, %d, v%d' % (T2, kk, T1))
        a('v_lshl_add_u32 v%d, v%d, 6, v%d' % (VKA + kk, T2, T0))
    a('v_bfe_u32 v%d, v%d, 2, 2' % (T0, VL))
    a('v_lshrrev_b32 v%d, 5, v%d' % (T1, VL))
    a('v_lshl_add_u32 v%d, v%d, 2, v%d' % (T1, T1, T0))
    a('v_lshlrev_b32 v%d, 8, v%d' % (T1, T1))
    a('v_bfe_u32 v%d, v%d, 4, 1' % (T2, VL))
    a('v_lshl_add_u32 v%d, v%d, 5, v%d' % (T1, T2, T1))
    a('v_bfe_u32 v%d, v%d, 1, 1' % (T2, VL))
    a('v_lshl_add_u32 v%d, v%d, 4, v%d' % (T1, T2, T1))
    a('v_and_b32 v%d, 1, v%d' % (T2, VL))
    a('v_lshl_add_u32 v%d, v%d, 3, v%d' % (T1, T2, T1))
    a('v_add_u32 v%d, 0x%x, v%d' % (T1, VRING, T1))
    for db in range(4):
        a('v_xor_b32 v%d, %d, v%d' % (T2, db, T0))
        a('v_lshl_add_u32 v%d, v%d, 6, v%d' % (VVA + db, T2, T1))
    VQA = 216
    a('v_and_b32 v%d, 31, v%d' % (T0, VL))
    a('v_lshl_add_u32 v%d, v%d, 5, v%d' % (T0, VW, T0))
    a('s_lshl_b32 s33, s31, 8')
    a('v_add_u32 v%d, s33, v%d' % (T0, T0))
    a('v_lshlrev_b32 v%d, 13, v%d' % (T0, T0))
    a('v_lshrrev_b32 v%d, 5, v%d' % (T1, VL))
    a('v_lshl_add_u32 v%d, v%d, 4, v%d' % (T0, T1, T0))
    a('s_lshl_b32 s33, s30, 8')
    a('v_add_u32 v%d, s33, v%d' % (VQA, T0))
    a('s_waitcnt lgkmcnt(0)')
    a('s_lshl_b32 s33, s30, 19')
    a('s_add_u32 s8, s6, s33')
    a('s_addc_u32 s9, s7, 0')
    a('s_and_b32 s9, s9, 0xffff')
    a('s_sub_u32 s10, 0x1000000, s33')
    a('s_mov_b32 s11, 0x00020000')
    a('s_add_u32 s12, s28, s33')
    a('s_addc_u32 s13, s29, 0')
    a('s_and_b32 s13, s13, 0xffff')
    a('s_sub_u32 s14, 0x1000000, s33')
    a('s_mov_b32 s15, 0x00020000')
    srd(a, 16, 4, WS_Q, 16 * MB)
    srd(a, 20, 4, WS_O, 16 * MB)
    for ks in range(8):
        a('buffer_load_dwordx4 v[%d:%d], v%d, s[16:19], 0 offen offset:%d' % (VQ + 4 * ks, VQ + 4 * ks + 3, VQA, ks * 32))
    a('s_mul_i32 s25, s32, 1040')
    a('s_lshl_b32 s26, s32, 10')
    a('s_add_u32 s26, s26, %d' % VRING)
    a('s_mov_b32 s24, 0')
    a('s_mov_b32 s36, 0x%x' % f32bits(2.0 ** 30))

    def dma_stage(st, with_v=True):
        out = []
        for j in range(2):
            out.append('s_add_u32 m0, s25, %d\ns_add_u32 s35, s24, %d\nbuffer_load_dwordx4 v%d, s[8:11], s35 offen lds'
                       % (st * KST + j * 8320, j * 8192, VDO))
        if with_v:
            for j in range(2):
                out.append('s_add_u32 m0, s26, %d\ns_sub_u32 s35, s24, %d\nbuffer_load_dwordx4 v%d, s[12:15], s35 offen lds'
                           % (st * VST + j * 8192, 16384 - j * 8192, VDO))
        out.append('s_add_u32 s24, s24, 16384')
        return out

    for g in dma_stage(0, False):
        a(g)
    for g in dma_stage(1):
        a(g)
    for g in dma_stage(2):
        a(g)
    for i in range(64):
        a('v_mov_b32 v%d, 0' % (VO_ + i))
    for i in range(16):
        a('v_mov_b32 v%d, 0' % (VC + i))
    a('v_mov_b32 v%d, 0' % VLS)
    a('s_waitcnt vmcnt(8)')
    a('s_barrier')

    class Seq:
        pass

    def qk_entries(blk_par, st, kb):
        S = VS + 16 * blk_par
        ents = []
        for ks in range(8):
            off = st * KST + kb * 8320 + (ks & 1) * 32
            ld = ['ds_read_b128 v[{f}:{f3}], v%d offset:%d' % (VKA + (ks >> 1), off)]
            c = 'v[%d:%d]' % (VC, VC + 15) if ks == 0 else 'v[%d:%d]' % (S, S + 15)
            m = 'v_mfma_f32_32x32x16_bf16 v[%d:%d], v[{f}:{f3}], v[%d:%d], %s' % (S, S + 15, VQ + 4 * ks, VQ + 4 * ks + 3, c)
            if 'at_nok' in EXP:
                ld = []
            ents.append((ld, m))
        return ents

    def pv_entries(blk_par, st, kb):
        P = VP + 8 * blk_par
        ents = []
        for db in range(4):
            for t in range(2):
                off = st * VST + kb * 8192 + t * 4096
                ld = ['ds_read_b64_tr_b16 v[{f}:{f1}], v%d offset:%d' % (VVA + db, off),
                      'ds_read_b64_tr_b16 v[{f2}:{f3}], v%d offset:%d' % (VVA + db, off + 2048)]
                o = VO_ + 16 * db
                m = 'v_mfma_f32_32x32x16_bf16 v[%d:%d], v[{f}:{f3}], v[%d:%d], v[%d:%d]' % (o, o + 15, P + 4 * t, P + 4 * t + 3, o, o + 15)
                if 'at_nov' in EXP:
                    ld = []
                ents.append((ld, m))
        return ents

    def sm_groups(par):
        S, P = VS + 16 * par, VP + 8 * par
        gs = []
        for k in range(9):
            g = []
            if k < 8:
                t = VT + 2 * (k & 1)
                g.append('v_exp_f32 v%d, v%d' % (t, S + 2 * k))
                g.append('v_exp_f32 v%d, v%d' % (t + 1, S + 2 * k + 1))
            if k >= 1:
                t = VT + 2 * ((k - 1) & 1)
                if k == 1:
                    g.append('v_add_f32 v%d, v%d, v%d' % (VPS, t, t + 1))
                else:
                    g.append('v_add_f32 v%d, v%d, v%d' % (VPS, VPS, t))
                    g.append('v_add_f32 v%d, v%d, v%d' % (VPS, VPS, t + 1))
                g.append('v_cvt_pk_bf16_f32 v%d, v%d, v%d' % (P + k - 1, t, t + 1))
            gs.append(g)
        return gs

    def iter_slots(u_mod, qk=True, pv=True, sm_a=True, sm_b=True, qk_b=True, pv_b=True):
        st = u_mod % NS
        s1 = dict(ents=(qk_entries(0, st, 0) if qk else []) + (pv_entries(0, st, 0) if pv else []), sm=1 if sm_a else None)
        s2 = dict(ents=(qk_entries(1, st, 1) if qk_b else []) + (pv_entries(1, st, 1) if pv_b else []), sm=0 if sm_b else None)
        return [s1, s2]

    state = dict(ring=0, q=[])

    def fmt(t, f):
        return t.format(f=f, f1=f + 1, f2=f + 2, f3=f + 3)

    def emit_program(slots, nxt_ents, barrier_info):
        ents = []
        for s in slots:
            ents += s['ents']
        n = len(ents)
        allents = ents + nxt_ents
        idx = 0
        for s in slots:
            ne = len(s['ents'])
            groups = sm_groups(s['sm']) if (s['sm'] is not None and 'at_nosm' not in EXP) else []
            gslots = [[] for _ in range(max(ne, 1))]
            for gi, g in enumerate(groups):
                gslots[min((gi * ne) // len(groups) if ne else 0, max(ne - 1, 0))].append(g)
            if ne == 0:
                for g in groups:
                    for t in g:
                        a(t)
            for e in range(ne):
                f = state['pend'].pop(0)
                cnt = 0
                for qid in reversed(state['q']):
                    if qid == id(allents[idx]):
                        break
                    cnt += 1
                if any(qid == id(allents[idx]) for qid in state['q']):
                    a('s_waitcnt lgkmcnt(%d)' % min(cnt, 15))
                    keep = state['q'][len(state['q']) - cnt:] if cnt else []
                    state['q'] = keep
                a(fmt(allents[idx][1], f))
                j = idx + R
                if j == n and barrier_info is not None:
                    barrier_info()
                if j < len(allents):
                    for ld in allents[j][0]:
                        a(fmt(ld, f))
                        state['q'].append(id(allents[j]))
                    state['pend'].append(f)
                for g in gslots[e]:
                    for t in g:
                        a(t)
                if state.get('dma'):
                    a(state['dma'].pop(0))
                idx += 1
            if s['sm'] is not None and 'at_nosm' not in EXP and 'at_nochk' not in EXP:
                par = s['sm']
                lab = '%sok%d' % (L, state.setdefault('nlab', 0))
                state['nlab'] += 1
                a('v_cmp_lt_f32 vcc, s36, v%d' % VPS)
                a('s_cbranch_vccz %s' % lab)
                a('s_call_b64 s[38:39], %srare%d' % (L, par))
                a.label(lab)
                a('v_add_f32 v%d, v%d, v%d' % (VLS, VLS, VPS))
        while state.get('dma'):
            a(state['dma'].pop(0))

    def preload(ents):
        state['pend'] = []
        for i in range(R):
            f = VF + 4 * i
            for ld in ents[i][0]:
                a(fmt(ld, f))
                state['q'].append(id(ents[i]))
            state['pend'].append(f)

    def mk_barrier(u_next_dma_slot):
        def fn():
            a('s_waitcnt vmcnt(4)')
            if 'at_nobar' not in EXP:
                a('s_barrier')
            if 'at_nodma' not in EXP:
                state['dma'] = dma_stage(u_next_dma_slot)
        return fn

    def flat(slots):
        o = []
        for s in slots:
            o += s['ents']
        return o

    it0a = [dict(ents=qk_entries(0, 0, 0), sm=None)]
    it0b = [dict(ents=qk_entries(1, 0, 1), sm=0)]
    its = {}
    for u in range(1, 9):
        its[u] = iter_slots(u)
    last = iter_slots(32, qk=False, qk_b=False, sm_b=False)
    preload(flat(it0a))
    emit_program(it0a, flat(it0b), None)
    a.nop(16)
    S0 = VS
    a('v_max3_f32 v%d, v%d, v%d, v%d' % (T0, S0, S0 + 1, S0 + 2))
    for i in range(3, 15, 2):
        a('v_max3_f32 v%d, v%d, v%d, v%d' % (T0, T0, S0 + i, S0 + i + 1))
    a('v_max_f32 v%d, v%d, v%d' % (T0, T0, S0 + 15))
    a('v_mov_b32 v%d, v%d' % (T1, T0))
    a('s_nop 1')
    a('v_permlane32_swap_b32 v%d, v%d' % (T1, T0))
    a('v_max_f32 v%d, v%d, v%d' % (T0, T0, T1))
    for i in range(16):
        a('v_sub_f32 v%d, v%d, v%d' % (S0 + i, S0 + i, T0))
        a('v_sub_f32 v%d, 0, v%d' % (VC + i, T0))
    a('s_nop 1')
    emit_program(it0b, flat(its[1]), mk_barrier(3))
    for u in range(1, 4):
        emit_program(its[u], flat(its[u + 1]), mk_barrier((u + 3) % NS))
    a('s_mov_b32 s27, 7')
    a.label(L + 'loop')
    q_at_top = len(state['q'])
    pend_top = list(state['pend'])
    for u in range(4, 8):
        emit_program(its[u], flat(its[u + 1]), mk_barrier((u + 3) % NS))
    assert len(state['q']) == q_at_top and pend_top == state['pend'], (q_at_top, len(state['q']), pend_top, state['pend'])
    a('s_sub_u32 s27, s27, 1')
    a('s_cmp_lg_u32 s27, 0')
    a('s_cbranch_scc1 %sloop' % L)
    a('s_waitcnt lgkmcnt(0)')
    state['q'] = []
    preload(flat(last))
    emit_program(last, [], None)
    a('s_waitcnt vmcnt(0)')
    a.nop(16)
    a('v_mov_b32 v%d, v%d' % (T1, VLS))
    a('s_nop 1')
    a('v_permlane32_swap_b32 v%d, v%d' % (T1, VLS))
    a('v_add_f32 v%d, v%d, v%d' % (T0, T1, VLS))
    a('v_rcp_f32 v%d, v%d' % (T0, T0))
    a('s_nop 0')
    for db in range(4):
        o = VO_ + 16 * db
        P = VS + 8 * db
        for i in range(16):
            a('v_mul_f32 v%d, v%d, v%d' % (o + i, o + i, T0))
        for i in range(8):
            a('v_cvt_pk_bf16_f32 v%d, v%d, v%d' % (P + i, o + 2 * i, o + 2 * i + 1))
        a('s_nop 1')
        a('v_permlane32_swap_b32 v%d, v%d' % (P + 0, P + 2))
        a('v_permlane32_swap_b32 v%d, v%d' % (P + 1, P + 3))
        a('v_permlane32_swap_b32 v%d, v%d' % (P + 4, P + 6))
        a('v_permlane32_swap_b32 v%d, v%d' % (P + 5, P + 7))
        a('buffer_store_dwordx4 v[%d:%d], v%d, s[20:23], 0 offen offset:%d' % (P, P + 3, VQA, db * 64))
        a('buffer_store_dwordx4 v[%d:%d], v%d, s[20:23], 0 offen offset:%d' % (P + 4, P + 7, VQA, db * 64 + 32))
    stamp_end(a, L + 'st')
    a.label(L + 'done')
    a('s_endpgm')
    for par in range(2):
        a.brk()
        a.label('%srare%d' % (L, par))
        cur, nx, P = VS + 16 * par, VS + 16 * (1 - par), VP + 8 * par
        a.nop(16)
        a('v_max3_f32 v%d, v%d, v%d, v%d' % (T0, cur, cur + 1, cur + 2))
        for i in range(3, 15, 2):
            a('v_max3_f32 v%d, v%d, v%d, v%d' % (T0, T0, cur + i, cur + i + 1))
        a('v_max_f32 v%d, v%d, v%d' % (T0, T0, cur + 15))
        a('v_mov_b32 v%d, v%d' % (T1, T0))
        a('s_nop 1')
        a('v_permlane32_swap_b32 v%d, v%d' % (T1, T0))
        a('v_max3_f32 v%d, v%d, v%d, 0' % (T0, T0, T1))
        a('v_sub_f32 v%d, 0, v%d' % (T1, T0))
        a('v_exp_f32 v%d, v%d' % (T1, T1))
        for i in range(16):
            a('v_sub_f32 v%d, v%d, v%d' % (VC + i, VC + i, T0))
            a('v_sub_f32 v%d, v%d, v%d' % (cur + i, cur + i, T0))
            a('v_sub_f32 v%d, v%d, v%d' % (nx + i, nx + i, T0))
        for i in range(64):
            a('v_mul_f32 v%d, v%d, v%d' % (VO_ + i, VO_ + i, T1))
        a('v_mul_f32 v%d, v%d, v%d' % (VLS, VLS, T1))
        for g in sm_groups(par):
            for t in g:
                a(t)
        a('s_nop 1')
        a('s_setpc_b64 s[38:39]')
    kernel_end(a, name, 224, 80)


def gen_g2(a):
    name = 'g2_kernel'
    L = 'L_g2_'
    XST = 32 * 1040
    WOFF = XST
    STG = XST + 32768
    kernel_begin(a, name)
    a('s_cmp_ge_u32 s2, 256')
    a('s_cbranch_scc1 %sdone' % L)
    stamp_begin(a)
    a('s_load_dwordx2 s[4:5], s[0:1], %d' % KA_WS)
    a('s_load_dwordx2 s[6:7], s[0:1], %d' % KA_WO)
    a('s_load_dwordx2 s[28:29], s[0:1], %d' % KA_WD)
    a('s_and_b32 s3, s2, 7')
    a('s_lshl_b32 s3, s3, 4')
    a('s_bfe_u32 s30, s2, 0x40003')
    a('s_add_u32 s3, s3, s30')
    a('s_lshr_b32 s30, s3, 3')
    a('s_and_b32 s31, s3, 7')
    a('s_lshr_b32 s40, s2, 7')
    VL, VW = 200, 201
    VXO, VWO = 202, 203
    VXA = 204
    VWA = 206
    T0, T1, T2, T3 = 210, 211, 212, 213
    a('v_and_b32 v%d, 63, v0' % VL)
    a('v_lshrrev_b32 v%d, 6, v0' % VW)
    a('s_nop 0')
    a('v_readfirstlane_b32 s32, v%d' % VW)
    a('s_waitcnt lgkmcnt(0)')
    a('s_mov_b32 s41, 8192')
    a('s_mov_b32 s42, 32')
    a('s_mov_b32 s43, 0x%x' % WS_O)
    a('s_mov_b32 s44, 0x%x' % (16 * MB))
    a('s_mov_b32 s45, 0x%x' % WS_S)
    a('s_mov_b32 s12, s6')
    a('s_mov_b32 s13, s7')
    a('s_mov_b32 s14, 0x%x' % (4096 * 2048))
    a('s_cmp_eq_u32 s40, 0')
    a('s_cbranch_scc1 %ssel' % L)
    a('s_mov_b32 s41, %d' % (FF * 2))
    a('s_mov_b32 s42, 28')
    a('s_mov_b32 s43, 0x%x' % WS_H)
    a('s_mov_b32 s44, 0x%x' % (S_TOK * FF * 2))
    a('s_mov_b32 s45, 0x%x' % WS_G)
    a('s_mov_b32 s12, s28')
    a('s_mov_b32 s13, s29')
    a('s_mov_b32 s14, 0x%x' % (FF * 2048))
    a.label(L + 'sel')
    a('s_and_b32 s13, s13, 0xffff')
    a('s_mov_b32 s15, 0x00020000')
    a('s_add_u32 s8, s4, s43')
    a('s_addc_u32 s9, s5, 0')
    a('s_and_b32 s9, s9, 0xffff')
    a('s_mov_b32 s10, s44')
    a('s_mov_b32 s11, 0x00020000')
    a('s_add_u32 s20, s4, s45')
    a('s_addc_u32 s21, s5, 0')
    a('s_and_b32 s21, s21, 0xffff')
    a('s_mov_b32 s22, 0x%x' % (4 * MB))
    a('s_mov_b32 s23, 0x00020000')
    a('v_lshrrev_b32 v%d, 4, v%d' % (T0, VL))
    a('v_and_b32 v%d, 15, v%d' % (T1, VL))
    a('v_lshlrev_b32 v%d, 2, v%d' % (T2, T0))
    a('v_xor_b32 v%d, v%d, v%d' % (T1, T1, T2))
    a('v_lshl_add_u32 v%d, v%d, 2, v%d' % (T0, VW, T0))
    a('v_lshlrev_b32 v%d, 11, v%d' % (T2, T0))
    a('v_lshl_add_u32 v%d, v%d, 4, v%d' % (VWO, T1, T2))
    a('s_lshl_b32 s33, s30, 7')
    a('v_add_u32 v%d, s33, v%d' % (T0, T0))
    a('v_mul_lo_u32 v%d, v%d, s41' % (T0, T0))
    a('v_lshl_add_u32 v%d, v%d, 4, v%d' % (VXO, T1, T0))
    a('v_bfe_u32 v%d, v%d, 2, 3' % (T0, VL))
    a('v_bfe_u32 v%d, v%d, 1, 1' % (T1, VW))
    a('v_lshl_add_u32 v%d, v%d, 4, v%d' % (T0, T1, T0))
    a('v_mul_u32_u24 v%d, 1040, v%d' % (T0, T0))
    a('v_and_b32 v%d, 3, v%d' % (T1, VL))
    a('v_lshl_add_u32 v%d, v%d, 8, v%d' % (T0, T1, T0))
    a('v_lshrrev_b32 v%d, 5, v%d' % (T2, VL))
    a('v_lshl_add_u32 v%d, v%d, 4, v%d' % (T0, T2, T0))
    a('v_lshrrev_b32 v%d, 2, v%d' % (T2, VW))
    a('v_lshlrev_b32 v%d, 1, v%d' % (T2, T2))
    a('v_xor_b32 v%d, v%d, v%d' % (T1, T1, T2))
    for kk in range(2):
        a('v_xor_b32 v%d, %d, v%d' % (T2, kk, T1))
        a('v_lshl_add_u32 v%d, v%d, 6, v%d' % (VXA + kk, T2, T0))
    a('v_bfe_u32 v%d, v%d, 2, 2' % (T0, VL))
    a('v_lshrrev_b32 v%d, 5, v%d' % (T1, VL))
    a('v_lshl_add_u32 v%d, v%d, 3, v%d' % (T1, T1, T0))
    a('v_lshrrev_b32 v%d, 2, v%d' % (T2, VW))
    a('v_lshl_add_u32 v%d, v%d, 6, v%d' % (T1, T2, T1))
    a('v_lshlrev_b32 v%d, 8, v%d' % (T1, T1))
    a('v_bfe_u32 v%d, v%d, 4, 1' % (T2, VL))
    a('v_lshl_add_u32 v%d, v%d, 5, v%d' % (T1, T2, T1))
    a('v_bfe_u32 v%d, v%d, 1, 1' % (T2, VL))
    a('v_lshl_add_u32 v%d, v%d, 4, v%d' % (T1, T2, T1))
    a('v_and_b32 v%d, 1, v%d' % (T2, VL))
    a('v_lshl_add_u32 v%d, v%d, 3, v%d' % (T1, T2, T1))
    a('v_add_u32 v%d, 0x%x, v%d' % (T1, WOFF, T1))
    a('v_and_b32 v%d, 1, v%d' % (T2, VW))
    a('v_lshlrev_b32 v%d, 1, v%d' % (T2, T2))
    a('v_xor_b32 v%d, v%d, v%d' % (T0, T0, T2))
    for nb in range(2):
        a('v_xor_b32 v%d, %d, v%d' % (T2, nb, T0))
        a('v_lshl_add_u32 v%d, v%d, 6, v%d' % (VWA + nb, T2, T1))
    a('s_mov_b32 s24, 0')
    a('s_lshl_b32 s25, s31, 8')
    a('s_mul_i32 s26, s32, 1040')
    a('s_lshl_b32 s34, s32, 10')
    a('s_add_u32 s34, s34, %d' % WOFF)
    a('s_lshl_b32 s46, s41, 5')
    a('s_mov_b32 s47, 0')

    def dma_list():
        out = []
        for j in range(4):
            pre = 's_mov_b32 s35, s24' if j == 0 else 's_add_u32 s35, s35, s46'
            out.append('s_add_u32 s37, s26, s47\ns_add_u32 m0, s37, %d\n%s\nbuffer_load_dwordx4 v%d, s[8:11], s35 offen lds'
                       % (j * 8320, pre, VXO))
        for j in range(4):
            out.append('s_add_u32 s37, s34, s47\ns_add_u32 m0, s37, %d\ns_add_u32 s35, s25, %d\nbuffer_load_dwordx4 v%d, s[12:15], s35 offen lds'
                       % (j * 8192, j * 32 * 2048, VWO))
        return out

    def advance():
        a('s_add_u32 s24, s24, 256')
        a('s_add_u32 s25, s25, %d' % (128 * 2048))
        a('s_sub_u32 s47, %d, s47' % STG)

    FA, FB = 64, 80

    def reads(ks, F, buf):
        o = buf * STG
        out = []
        for nb in range(2):
            out.append('ds_read_b64_tr_b16 v[%d:%d], v%d offset:%d' % (F + 4 * nb, F + 4 * nb + 1, VWA + nb, o + ks * 4096))
            out.append('ds_read_b64_tr_b16 v[%d:%d], v%d offset:%d' % (F + 4 * nb + 2, F + 4 * nb + 3, VWA + nb, o + ks * 4096 + 1024))
        for tb in range(2):
            out.append('ds_read_b128 v[%d:%d], v%d offset:%d' % (F + 8 + 4 * tb, F + 11 + 4 * tb, VXA + (ks >> 1), o + tb * 8320 + (ks & 1) * 32))
        return [out[0], out[1], out[4], out[2], out[3], out[5]]

    def mf(F, first=False):
        out = []
        for tb in range(2):
            for nb in range(2):
                acc = nb * 32 + tb * 16
                c = '0' if first else 'v[%d:%d]' % (acc, acc + 15)
                out.append('v_mfma_f32_32x32x16_bf16 v[%d:%d], v[%d:%d], v[%d:%d], %s'
                           % (acc, acc + 15, F + 4 * nb, F + 4 * nb + 3, F + 8 + 4 * tb, F + 11 + 4 * tb, c))
        return out

    def toggle(sign):
        op = 'v_add_u32 v%d, 0x%x, v%d' if sign > 0 else 'v_subrev_u32 v%d, 0x%x, v%d'
        return [op % (r, STG, r) for r in (VXA, VXA + 1, VWA, VWA + 1)]

    for g in dma_list():
        a(g)
    advance()
    a('s_waitcnt vmcnt(0)')
    a('s_barrier')
    for g in dma_list():
        a(g)
    advance()
    for r in reads(0, FA, 0):
        a(r)

    def stage(first, dma, nxt, sign):
        for ks in range(3):
            a('s_waitcnt lgkmcnt(0)')
            cur, oth = (FA, FB) if ks % 2 == 0 else (FB, FA)
            rd = reads(ks + 1, oth, 0)
            m = mf(cur, first and ks == 0)
            for i in range(4):
                a(m[i])
                if i < 3:
                    a(rd[2 * i]); a(rd[2 * i + 1])
        a('s_waitcnt lgkmcnt(0)')
        m = mf(FB)
        if 'g2_nodma' in EXP:
            dma = False
        if nxt:
            a('s_waitcnt vmcnt(0)')
            if 'g2_nobar' not in EXP:
                a('s_barrier')
            for t in toggle(sign):
                a(t)
            rd = reads(0, FA, 0)
            dl = dma_list() if dma else []
            for i in range(4):
                a(m[i])
                if i < 3:
                    a(rd[2 * i]); a(rd[2 * i + 1])
                if dl:
                    a(dl[2 * i]); a(dl[2 * i + 1])
            if dma:
                advance()
        else:
            for i in range(4):
                a(m[i])

    stage(True, True, True, +1)
    stage(False, True, True, -1)
    a('s_sub_u32 s27, s42, 4')
    a('s_lshr_b32 s27, s27, 1')
    a.label(L + 'loop')
    stage(False, True, True, +1)
    stage(False, True, True, -1)
    a('s_sub_u32 s27, s27, 1')
    a('s_cmp_lg_u32 s27, 0')
    a('s_cbranch_scc1 %sloop' % L)
    stage(False, False, True, +1)
    stage(False, False, False, -1)
    a.nop(16)
    a('s_barrier')
    a('v_lshlrev_b32 v%d, 4, v%d' % (T0, VL))
    a('v_lshl_add_u32 v%d, v%d, 13, v%d' % (T1, VW, T0))
    a('v_xor_b32 v%d, 4, v%d' % (T2, VW))
    a('v_lshl_add_u32 v%d, v%d, 13, v%d' % (T2, T2, T0))
    a('s_cmp_ge_u32 s32, 4')
    a('s_cbranch_scc1 %shi' % L)
    for i in range(8):
        a('ds_write_b128 v%d, v[%d:%d] offset:%d' % (T1, 32 + 4 * i, 35 + 4 * i, i * 1024))
    a('s_waitcnt lgkmcnt(0)')
    a('s_barrier')
    for i in range(8):
        a('ds_read_b128 v[%d:%d], v%d offset:%d' % (64 + 4 * i, 67 + 4 * i, T2, i * 1024))
    a('s_waitcnt lgkmcnt(0)')
    for i in range(32):
        a('v_add_f32 v%d, v%d, v%d' % (i, i, 64 + i))
    a('s_branch %sjoin' % L)
    a.label(L + 'hi')
    a.brk()
    for i in range(8):
        a('ds_write_b128 v%d, v[%d:%d] offset:%d' % (T1, 4 * i, 3 + 4 * i, i * 1024))
    a('s_waitcnt lgkmcnt(0)')
    a('s_barrier')
    for i in range(8):
        a('ds_read_b128 v[%d:%d], v%d offset:%d' % (64 + 4 * i, 67 + 4 * i, T2, i * 1024))
    a('s_waitcnt lgkmcnt(0)')
    for i in range(32):
        a('v_add_f32 v%d, v%d, v%d' % (i, 32 + i, 64 + i))
    a.label(L + 'join')
    a.brk()
    VO = 204
    a('v_and_b32 v%d, 31, v%d' % (T0, VL))
    a('v_bfe_u32 v%d, v%d, 1, 1' % (T1, VW))
    a('v_lshl_add_u32 v%d, v%d, 6, v%d' % (T0, T1, T0))
    a('s_lshl_b32 s33, s30, 7')
    a('v_add_u32 v%d, s33, v%d' % (T0, T0))
    a('v_lshlrev_b32 v%d, 11, v%d' % (T0, T0))
    a('v_and_b32 v%d, 1, v%d' % (T1, VW))
    a('v_lshl_add_u32 v%d, v%d, 7, v%d' % (T0, T1, T0))
    a('v_lshrrev_b32 v%d, 2, v%d' % (T1, VW))
    a('v_lshl_add_u32 v%d, v%d, 6, v%d' % (T0, T1, T0))
    a('v_lshrrev_b32 v%d, 5, v%d' % (T1, VL))
    a('v_lshl_add_u32 v%d, v%d, 4, v%d' % (T0, T1, T0))
    a('s_lshl_b32 s33, s31, 8')
    a('v_add_u32 v%d, s33, v%d' % (VO, T0))
    a('s_cmp_eq_u32 s40, 0')
    a('s_cbranch_scc1 %snosilu' % L)
    a('s_mov_b32 s36, 0x%x' % f32bits(-math.log2(math.e)))
    for i in range(0, 32, 2):
        a('v_cvt_pk_bf16_f32 v%d, v%d, v%d' % (T0, i, i + 1))
        a('v_lshlrev_b32 v%d, 16, v%d' % (i, T0))
        a('v_and_b32 v%d, 0xffff0000, v%d' % (i + 1, T0))
        for r in (i, i + 1):
            a('v_mul_f32 v%d, s36, v%d' % (T1, r))
            a('v_exp_f32 v%d, v%d' % (T1, T1))
            a('s_nop 0')
            a('v_add_f32 v%d, 1.0, v%d' % (T1, T1))
            a('v_rcp_f32 v%d, v%d' % (T1, T1))
            a('s_nop 0')
            a('v_mul_f32 v%d, v%d, v%d' % (r, r, T1))
    a.label(L + 'nosilu')
    a.brk()
    for tb in range(2):
        src, P = tb * 16, 64 + tb * 8
        a('s_mov_b32 s37, %d' % (tb * 32 * 2048))
        for i in range(8):
            a('v_cvt_pk_bf16_f32 v%d, v%d, v%d' % (P + i, src + 2 * i, src + 2 * i + 1))
        a('s_nop 1')
        a('v_permlane32_swap_b32 v%d, v%d' % (P + 0, P + 2))
        a('v_permlane32_swap_b32 v%d, v%d' % (P + 1, P + 3))
        a('v_permlane32_swap_b32 v%d, v%d' % (P + 4, P + 6))
        a('v_permlane32_swap_b32 v%d, v%d' % (P + 5, P + 7))
        a('buffer_store_dwordx4 v[%d:%d], v%d, s[20:23], s37 offen offset:0' % (P, P + 3, VO))
        a('buffer_store_dwordx4 v[%d:%d], v%d, s[20:23], s37 offen offset:32' % (P + 4, P + 7, VO))
    stamp_end(a, L + 'st')
    a.label(L + 'done')
    a('s_endpgm')
    kernel_end(a, name, 216, 80)
    return 2 * STG


def gen_comb(a):
    name = 'comb_kernel'
    kernel_begin(a, name)
    a('s_cmp_ge_u32 s2, 1024')
    a('s_cbranch_scc1 L_cb_done')
    a('s_load_dwordx2 s[4:5], s[0:1], %d' % KA_X)
    a('s_load_dwordx2 s[6:7], s[0:1], %d' % KA_WS)
    a('s_load_dwordx2 s[24:25], s[0:1], %d' % KA_OUT)
    a('s_lshl_b32 s3, s2, 12')
    a('v_lshl_add_u32 v1, v0, 4, s3')
    a('s_waitcnt lgkmcnt(0)')
    srd(a, 8, 4, 0, 4 * MB)
    srd(a, 12, 6, WS_S, 4 * MB)
    srd(a, 16, 6, WS_G, 4 * MB)
    srd(a, 20, 24, 0, 4 * MB)
    a('buffer_load_dwordx4 v[4:7], v1, s[8:11], 0 offen')
    a('buffer_load_dwordx4 v[8:11], v1, s[12:15], 0 offen')
    a('buffer_load_dwordx4 v[12:15], v1, s[16:19], 0 offen')
    a('s_waitcnt vmcnt(0)')
    for i in range(4):
        a('v_lshlrev_b32 v16, 16, v%d' % (8 + i))
        a('v_and_b32 v17, 0xffff0000, v%d' % (8 + i))
        a('v_lshlrev_b32 v18, 16, v%d' % (12 + i))
        a('v_and_b32 v19, 0xffff0000, v%d' % (12 + i))
        a('v_mul_f32 v16, v16, v18')
        a('v_mul_f32 v17, v17, v19')
        a('v_cvt_pk_bf16_f32 v16, v16, v17')
        a('v_and_b32 v17, 0xffff0000, v16')
        a('v_lshlrev_b32 v16, 16, v16')
        a('v_lshlrev_b32 v18, 16, v%d' % (4 + i))
        a('v_and_b32 v19, 0xffff0000, v%d' % (4 + i))
        a('v_add_f32 v16, v16, v18')
        a('v_add_f32 v17, v17, v19')
        a('v_cvt_pk_bf16_f32 v%d, v16, v17' % (4 + i))
    a('buffer_store_dwordx4 v[4:7], v1, s[20:23], 0 offen')
    a.label('L_cb_done')
    a('s_endpgm')
    kernel_end(a, name, 24, 32)


def main(out):
    a = Asm()
    hdr = open(os.path.join(os.path.dirname(os.path.abspath(__file__)), '..', 'cdna_kernels', NAME + '.s.ref')).read().split('\n')
    head = [l for l in hdr if l.startswith(';') and '@launch' not in l and 'Override launch' not in l and 'grid=ceil' not in l]
    body = Asm()
    gen_ln(body)
    gen_g1(body, 'gu')
    gen_g1(body, 'q')
    gen_attn(body)
    g2lds = gen_g2(body)
    gen_comb(body)
    probs = body.check()
    for p in probs:
        print('HAZARD:', p)
    launches = [
        ('ln_kernel', 512, 256, 0),
        ('g1gu_kernel', 224, 512, 131072),
        ('g1q_kernel', 128, 512, 131072),
        ('attn_kernel', 256, 512, 4 * 16640 + 4 * 16384),
        ('g2_kernel', 256, 512, g2lds),
        ('comb_kernel', 1024, 256, 0),
    ]
    txt = '\n'.join(head) + '\n'
    for k, g, b, l in launches:
        txt += '; @launch kernel=%s grid=(%d,1,1) block=(%d,1,1) lds=%d\n' % (k, g, b, l)
    txt += '.amdgcn_target "amdgcn-amd-amdhsa--gfx950"\n'
    txt += body.text()
    open(out, 'w').write(txt)
    print('wrote', out, len(txt), 'bytes;', len(probs), 'hazards')


if __name__ == '__main__':
    main(sys.argv[1] if len(sys.argv) > 1 else os.path.join(os.path.dirname(os.path.abspath(__file__)), '..', 'cdna_kernels', NAME + '.s'))
```

```python
import sys, os
sys.path.insert(0, os.path.dirname(os.path.abspath(__file__)))
from emit import Asm
import gen
from gen import kernel_begin, kernel_end, srd, KA_K, KA_DBG, MB

def mk(a, name, shape, iters):
    kernel_begin(a, name)
    a('s_load_dwordx2 s[4:5], s[0:1], %d' % KA_K)
    a('s_load_dwordx2 s[68:69], s[0:1], %d' % KA_DBG)
    a('v_lshlrev_b32 v200, 4, v0')
    a('s_lshl_b32 s3, s2, 13')
    a('v_add_u32 v200, s3, v200')
    a('v_mov_b32 v201, v0')
    a('s_waitcnt lgkmcnt(0)')
    srd(a, 8, 4, 0, 16 * MB)
    for i in range(6):
        a('s_mov_b32 s20, %d' % (i * 2 * MB))
        a('buffer_load_dwordx4 v[%d:%d], v200, s[8:11], s20 offen' % (128 + 4 * i, 131 + 4 * i))
    for i in range(128):
        a('v_mov_b32 v%d, 0' % i)
    a('s_waitcnt vmcnt(0)')
    a('s_memtime s[60:61]')
    a('s_memrealtime s[62:63]')
    a('s_waitcnt lgkmcnt(0)')
    a('s_mov_b32 s27, %d' % iters)
    a.label('L_%s_loop' % name)
    if shape == 32:
        for tb in range(4):
            for nb in range(2):
                acc = nb * 64 + tb * 16
                a('v_mfma_f32_32x32x16_bf16 v[%d:%d], v[%d:%d], v[%d:%d], v[%d:%d]' % (acc, acc + 15, 128 + 4 * nb, 131 + 4 * nb, 136 + 4 * tb, 139 + 4 * tb, acc, acc + 15))
    else:
        for rep in range(2):
            for tb in range(4):
                for nb in range(2):
                    acc = rep * 32 + nb * 16 + tb * 4
                    a('v_mfma_f32_16x16x32_bf16 v[%d:%d], v[%d:%d], v[%d:%d], v[%d:%d]' % (acc, acc + 3, 128 + 4 * nb, 131 + 4 * nb, 136 + 4 * tb, 139 + 4 * tb, acc, acc + 3))
    a('s_sub_u32 s27, s27, 1')
    a('s_cmp_lg_u32 s27, 0')
    a('s_cbranch_scc1 L_%s_loop' % name)
    a.nop(16)
    a('s_memtime s[64:65]')
    a('s_memrealtime s[66:67]')
    a('s_waitcnt lgkmcnt(0)')
    a('s_cmp_lg_u32 s2, 5')
    a('s_cbranch_scc1 L_%s_st' % name)
    a('s_sub_u32 s64, s64, s60')
    a('s_sub_u32 s66, s66, s62')
    a('s_mov_b32 s72, s68')
    a('s_and_b32 s73, s69, 0xffff')
    a('s_mov_b32 s74, 256')
    a('s_mov_b32 s75, 0x00020000')
    a('v_mov_b32 v202, s64')
    a('v_mov_b32 v203, s66')
    for i in range(0, 128, 16):
        a('v_add_f32 v204, v%d, v%d' % (i, i + 1))
    a('v_lshlrev_b32 v201, 3, v201')
    a('buffer_store_dwordx2 v[202:203], v201, s[72:75], 0 offen')
    a.label('L_%s_st' % name)
    a('s_endpgm')
    kernel_end(a, name, 216, 80)

a = Asm()
mk(a, 'm32_kernel', 32, 1000)
mk(a, 'm16_kernel', 16, 1000)
txt = ''
for k in ('m32_kernel', 'm16_kernel', 'm32_kernel', 'm16_kernel'):
    txt += '; @launch kernel=%s grid=(256,1,1) block=(512,1,1) lds=0\n' % k
txt += '.amdgcn_target "amdgcn-amd-amdhsa--gfx950"\n' + a.text()
open('mb1.s', 'w').write(txt)
```
